```python
import torch

def _softmax(x, axis=-1):
    return torch.softmax(x, dim=axis)
def _gelu(x):
    return torch.nn.functional.gelu(x, approximate="tanh")
def _silu(x):
    return torch.nn.functional.silu(x)
def _sigmoid(x):
    return torch.sigmoid(x)
def _layernorm(x, axis=-1, eps=1e-5):
    m = x.mean(dim=axis, keepdim=True)
    v = x.var(dim=axis, keepdim=True, unbiased=False)
    return (x - m) / torch.sqrt(v + eps)
def _scatter_add(tgt, idx, src, axis=0):
    return tgt.clone().index_add_(axis, idx, src)
def _segment_sum(src, seg, n):
    out = torch.zeros((n,) + src.shape[1:], dtype=src.dtype)
    return out.index_add_(0, seg, src)
def _pad(x, pw):
    flat = tuple(v for pair in reversed(pw) for v in pair)
    return torch.nn.functional.pad(x, flat)

kernel_name = 'interleave_layers__linear_attn_block__dense_activation_gelu__prompt'

def setup_inputs():

    _w = (lambda a: (lambda t: t.to(torch.bfloat16) if t.is_floating_point() else t)(torch.as_tensor(a)))
    def _A_setup():
        B, S, D = 1, 2048, 640
        return {
            "x": _w((lambda *s: torch.randn(*s, dtype=torch.bfloat16) * 0.05)(B, S, D)),
            "wqkv": _w((lambda *s: torch.randn(*s, dtype=torch.bfloat16) * 0.05)(D, 3 * D)),
            "wo": _w((lambda *s: torch.randn(*s, dtype=torch.bfloat16) * 0.05)(D, D)),
        }
    _A_in = _A_setup()

    def _B_setup():
        B, S, D, F = 1, 2048, 640, 1728
        return {
            "x": _w((lambda *s: torch.randn(*s, dtype=torch.bfloat16) * 0.05)(B, S, D)),
            "w1": _w((lambda *s: torch.randn(*s, dtype=torch.bfloat16) * 0.8)(D, F) * (D ** -0.5)),
            "b1": _w((lambda *s: torch.randn(*s, dtype=torch.bfloat16) * 0.8)(F) * 0.01),
            "w2": _w((lambda *s: torch.randn(*s, dtype=torch.bfloat16) * 0.8)(F, D) * (F ** -0.5)),
            "b2": _w((lambda *s: torch.randn(*s, dtype=torch.bfloat16) * 0.8)(D) * 0.01),
        }
    _B_in = _B_setup()

    return {
        "A_x": _A_in["x"],
        "A_wqkv": _A_in["wqkv"],
        "A_wo": _A_in["wo"],
        "B_x": _B_in["x"],
        "B_w1": _B_in["w1"],
        "B_b1": _B_in["b1"],
        "B_w2": _B_in["w2"],
        "B_b2": _B_in["b2"],
    }

def reference(A_x, A_wqkv, A_wo, B_x, B_w1, B_b1, B_w2, B_b2):
    def _A_ref(x, wqkv, wo):
        B, S, D = x.shape
        H = 32; Dh = D // H
        qkv = (lambda x, *d: x.permute(*d))((x @ wqkv).reshape(B, S, 3, H, Dh), 2, 0, 3, 1, 4)
        q, k, v = qkv[0], qkv[1], qkv[2]
        phi = lambda t: torch.where(t > 0, t + 1, torch.exp(t)) + 1e-6
        pq, pk = phi(q), phi(k)
        kv = torch.einsum("bhsd,bhse->bhde", pk, v)
        z = torch.einsum("bhsd->bhd", pk)
        num = torch.einsum("bhqd,bhde->bhqe", pq, kv)
        den = torch.einsum("bhqd,bhd->bhq", pq, z)[..., None] + 1e-6
        o = num / den
        return (lambda x, *d: x.permute(*d))(o, 0, 2, 1, 3).reshape(B, S, D) @ wo

    def _B_ref(x, w1, b1, w2, b2):
        h = torch.einsum("bsd,df->bsf", x, w1) + b1
        h = _gelu(h)
        return torch.einsum("bsf,fd->bsd", h, w2) + b2

    x = A_x
    x = x + _A_ref(_layernorm(x, axis=-1), A_wqkv, A_wo)
    x = x + _B_ref(_layernorm(x, axis=-1), B_w1, B_b1, B_w2, B_b2)
    x = x + _A_ref(_layernorm(x, axis=-1), A_wqkv, A_wo)
    x = x + _B_ref(_layernorm(x, axis=-1), B_w1, B_b1, B_w2, B_b2)
    return x
```

```python
import sys

OUT = "interleave_layers__linear_attn_block__dense_activation_gelu__prompt.s"

WS_X1 = 0x0
WS_X2 = 0x300000
WS_X3 = 0x600000
WS_PQ = 0x900000
WS_H = 0xC00000
WS_KV = 0x1400000
WS_KV_L = 0x20000
WS_CSQ = 0x1440000
WS_CS1 = 0x1444000
WS_ST = 0x1480000
WS_ST_V = 0x20000

XB = 2048 * 640 * 2
HB = 2048 * 1728 * 2

LOG2E = 1.4426950408889634


def f2u(x):
    import struct
    return struct.unpack("<I", struct.pack("<f", x))[0]


class Gen:
    def __init__(self):
        self.L = []

    def e(self, s):
        self.L.append("    " + s)

    def c(self, s):
        self.L.append("    ; " + s)

    def lab(self, s):
        self.L.append(s + ":")

    def raw(self, s):
        self.L.append(s)


def srd_from(g, s, lo, hi, nbytes):
    g.e(f"s_mov_b32 s{s}, s{lo}")
    g.e(f"s_mov_b32 s{s+1}, s{hi}")
    g.e(f"s_mov_b32 s{s+2}, {nbytes}")
    g.e(f"s_mov_b32 s{s+3}, 0x00020000")


def srd_ws(g, s, off, nbytes, tmp=98):
    g.e(f"s_add_u32 s{s}, s24, {off}")
    g.e(f"s_addc_u32 s{s+1}, s25, 0")
    g.e(f"s_mov_b32 s{s+2}, {nbytes}")
    g.e(f"s_mov_b32 s{s+3}, 0x00020000")


def load_kernargs(g):
    g.e("s_load_dwordx16 s[4:19], s[0:1], 0")
    g.e("s_load_dwordx4 s[20:23], s[0:1], 64")
    g.e("s_load_dwordx2 s[24:25], s[0:1], 80")


KERNELS = []


def kernel_begin(g, name):
    g.raw(f".globl {name}")
    g.raw(".p2align 8")
    g.raw(f".type {name},@function")
    g.lab(name)


def gen_k0(g):
    kernel_begin(g, "k0_prep_kernel")
    load_kernargs(g)
    g.e("s_cmp_ge_u32 s2, 201")
    g.e("s_cbranch_scc1 K0_end")
    g.e("s_waitcnt lgkmcnt(0)")
    g.e("s_cmp_ge_u32 s2, 185")
    g.e("s_cbranch_scc1 K0_zero")
    g.e("s_cmp_ge_u32 s2, 128")
    g.e("s_cbranch_scc1 K0_colsum")
    srd_from(g, 28, 4, 5, XB)
    srd_ws(g, 32, WS_ST, WS_ST_V)
    g.e("v_lshrrev_b32 v1, 4, v0")
    g.e("s_lshl_b32 s3, s2, 4")
    g.e("v_add_u32 v1, s3, v1")
    g.e("v_and_b32 v2, 15, v0")
    g.e("v_mul_u32_u24 v3, 1280, v1")
    g.e("v_mul_u32_u24 v4, 80, v2")
    g.e("v_add_u32 v3, v3, v4")
    for i in range(5):
        g.e(f"buffer_load_dwordx4 v[{8+4*i}:{11+4*i}], v3, s[28:31], 0 offen offset:{16*i}")
    g.e("s_waitcnt vmcnt(0)")
    for i in range(20):
        g.e(f"v_lshlrev_b32 v{32+2*i}, 16, v{8+i}")
        g.e(f"v_and_b32 v{33+2*i}, 0xffff0000, v{8+i}")
    g.e("v_add_f32 v5, v32, v33")
    for i in range(2, 40):
        g.e(f"v_add_f32 v5, v5, v{32+i}")
    g.e("s_nop 1")
    g.e("v_add_f32_dpp v6, v5, v5 quad_perm:[1,0,3,2] row_mask:0xf bank_mask:0xf")
    g.e(f"v_mul_f32 v7, {f2u(1.0/80.0)}, v6")
    g.e("v_mov_b32 v8, 0")
    for i in range(40):
        g.e(f"v_sub_f32 v9, v{32+i}, v7")
        g.e(f"v_fma_f32 v8, v9, v9, v8")
    g.e("s_nop 1")
    g.e("v_add_f32_dpp v7, v8, v8 quad_perm:[1,0,3,2] row_mask:0xf bank_mask:0xf")
    g.e("v_lshlrev_b32 v10, 6, v1")
    g.e("v_lshrrev_b32 v11, 1, v2")
    g.e("v_lshlrev_b32 v11, 3, v11")
    g.e("v_add_u32 v10, v10, v11")
    g.e("v_and_b32 v11, 1, v2")
    g.e("v_cmp_eq_u32 vcc, 0, v11")
    g.e("s_and_saveexec_b64 s[40:41], vcc")
    g.e("buffer_store_dwordx2 v[6:7], v10, s[32:35], 0 offen")
    g.e("s_mov_b64 exec, s[40:41]")
    g.e("s_endpgm")
    g.lab("K0_colsum")
    g.e("s_sub_u32 s3, s2, 128")
    g.e("s_cmp_ge_u32 s3, 30")
    g.e("s_cbranch_scc1 K0_cs_w1")
    srd_from(g, 28, 6, 7, 640 * 1920 * 2)
    srd_ws(g, 32, WS_CSQ, 1920 * 4)
    g.e("s_movk_i32 s42, 3840")
    g.e("s_branch K0_cs_go")
    g.lab("K0_cs_w1")
    g.e("s_sub_u32 s3, s3, 30")
    srd_from(g, 28, 12, 13, 640 * 1728 * 2)
    srd_ws(g, 32, WS_CS1, 1728 * 4)
    g.e("s_movk_i32 s42, 3456")
    g.lab("K0_cs_go")
    g.e("v_and_b32 v1, 7, v0")
    g.e("v_lshrrev_b32 v2, 3, v0")
    g.e("v_mul_lo_u32 v3, s42, v2")
    g.e("v_lshlrev_b32 v4, 4, v1")
    g.e("v_add_u32 v3, v3, v4")
    g.e("s_lshl_b32 s43, s3, 7")
    g.e("s_lshl_b32 s44, s42, 5")
    for i in range(20):
        g.e(f"buffer_load_dwordx4 v[{8+4*i}:{11+4*i}], v3, s[28:31], s43 offen")
        if i < 19:
            g.e("s_add_u32 s43, s43, s44")
    g.e("s_waitcnt vmcnt(0)")
    for j in range(8):
        g.e(f"v_mov_b32 v{100+j}, 0")
    for i in range(20):
        for d in range(4):
            g.e(f"v_lshlrev_b32 v96, 16, v{8+4*i+d}")
            g.e(f"v_and_b32 v97, 0xffff0000, v{8+4*i+d}")
            g.e(f"v_add_f32 v{100+2*d}, v{100+2*d}, v96")
            g.e(f"v_add_f32 v{101+2*d}, v{101+2*d}, v97")
    g.e("v_lshlrev_b32 v4, 8, v2")
    g.e("v_lshlrev_b32 v5, 5, v1")
    g.e("v_add_u32 v4, v4, v5")
    g.e("ds_write_b128 v4, v[100:103]")
    g.e("ds_write_b128 v4, v[104:107] offset:16")
    g.e("s_waitcnt lgkmcnt(0)")
    g.e("s_barrier")
    g.e("v_cmp_gt_u32 vcc, 64, v0")
    g.e("s_and_saveexec_b64 s[40:41], vcc")
    g.e("s_cbranch_execz K0_cs_done")
    g.e("v_lshlrev_b32 v4, 2, v0")
    for i in range(32):
        g.e(f"ds_read_b32 v{8+i}, v4 offset:{256*i}")
    g.e("s_waitcnt lgkmcnt(0)")
    for i in range(1, 32):
        g.e(f"v_add_f32 v8, v8, v{8+i}")
    g.e("s_lshl_b32 s43, s3, 8")
    g.e("buffer_store_dword v8, v4, s[32:35], s43 offen")
    g.lab("K0_cs_done")
    g.e("s_mov_b64 exec, s[40:41]")
    g.e("s_endpgm")
    g.lab("K0_zero")
    srd_ws(g, 32, WS_KV, 2 * WS_KV_L)
    g.e("s_sub_u32 s3, s2, 185")
    g.e("s_lshl_b32 s3, s3, 14")
    g.e("v_lshlrev_b32 v1, 4, v0")
    for j in range(4):
        g.e(f"v_mov_b32 v{4+j}, 0")
    for j in range(4):
        g.e(f"buffer_store_dwordx4 v[4:7], v1, s[32:35], s3 offen offset:{4096*j if j < 1 else 0}" if False else
            f"buffer_store_dwordx4 v[4:7], v1, s[32:35], s3 offen")
        if j < 3:
            g.e("s_add_u32 s3, s3, 4096")
    g.lab("K0_end")
    g.e("s_endpgm")
    KERNELS.append(("k0_prep_kernel", 128, 64))


def div_magic(n, qmax):
    for S in range(8, 24):
        M = (1 << S) // n + 1
        if M >= (1 << 24):
            continue
        if all(((q * M) >> S) == q // n for q in range(qmax)):
            return M, S
    raise RuntimeError("no magic")


def emit_divmod(g, vq, vdiv, vmod, n, qmax, vt):
    M, S = div_magic(n, qmax)
    g.e(f"v_mov_b32 v{vt}, {M}")
    g.e(f"v_mul_u32_u24 v{vdiv}, v{vt}, v{vq}")
    g.e(f"v_lshrrev_b32 v{vdiv}, {S}, v{vdiv}")
    g.e(f"v_mul_u32_u24 v{vt}, {n}, v{vdiv}")
    g.e(f"v_sub_u32 v{vmod}, v{vq}, v{vt}")


class Loop:
    def __init__(self, g, mf, BS, BN, BK, nstep, nstage, xb, xsz, wb, wsz,
                 sblks, nblks, transposed, acc0, fr0, fr1,
                 vx_dma, vw_dma, nx_dma, nw_dma, vx_rd, vw_rd,
                 s_xoff, s_woff, s_m0x, s_m0w, xstep_bytes, wstep_bytes,
                 x_resident=False, last_sub=None, w_imm_nb=None, sx_srd=28, sw_srd=32,
                 extra_at_step0=None, vx_hi=None, x_hi_delta=0, vw_hi=None, w_hi_delta=0):
        self.__dict__.update(locals())

    def issue_dma(self, st):
        g = self.g
        slot = st % self.nstage
        if not self.x_resident:
            for j in range(self.nx_dma):
                g.e(f"s_add_u32 m0, s{self.s_m0x}, {self.xb + slot*self.xsz + 1024*j}")
                g.e(f"s_nop 0")
                g.e(f"buffer_load_dwordx4 v{self.vx_dma+j}, s[{self.sx_srd}:{self.sx_srd+3}], s{self.s_xoff} offen lds")
            g.e(f"s_add_u32 s{self.s_xoff}, s{self.s_xoff}, {self.xstep_bytes}")
        for j in range(self.nw_dma):
            g.e(f"s_add_u32 m0, s{self.s_m0w}, {self.wb + slot*self.wsz + 1024*j}")
            g.e(f"s_nop 0")
            g.e(f"buffer_load_dwordx4 v{self.vw_dma+j}, s[{self.sw_srd}:{self.sw_srd+3}], s{self.s_woff} offen lds")
        g.e(f"s_add_u32 s{self.s_woff}, s{self.s_woff}, {self.wstep_bytes}")

    def reads(self, st, kk, fr):
        g = self.g
        slot = st % self.nstage
        n = 0
        ksub = 16 if self.mf == 32 else 32
        for i, sb in enumerate(self.sblks):
            if self.x_resident:
                off = self.xb + st * self.xsz
            else:
                off = self.xb + slot * self.xsz
            va = self.vx_rd + (i * (self.BK // ksub) + kk)
            if off >= 65536:
                va = self.vx_hi + (i * (self.BK // ksub) + kk)
                off -= self.x_hi_delta
            assert off < 65536
            g.e(f"ds_read_b128 v[{fr+4*i}:{fr+4*i+3}], v{va} offset:{off}")
            n += 1
        base = fr + 4 * len(self.sblks)
        pitch = self.BN * 2
        for i, nb in enumerate(self.nblks):
            va, imm = self.w_imm_nb(i, nb)
            off = slot * self.wsz + kk * ksub * pitch + imm
            hi2 = (4 if self.mf == 32 else 8) * pitch
            if off + hi2 >= 65536:
                va = self.vw_hi
                off -= self.w_hi_delta
            assert off + hi2 < 65536, (off, hi2)
            g.e(f"ds_read_b64_tr_b16 v[{base+4*i}:{base+4*i+1}], v{va} offset:{off}")
            g.e(f"ds_read_b64_tr_b16 v[{base+4*i+2}:{base+4*i+3}], v{va} offset:{off+hi2}")
            n += 2
        return n

    def mfmas(self, fr):
        g = self.g
        nacc = 16 if self.mf == 32 else 4
        op = "v_mfma_f32_32x32x16_bf16" if self.mf == 32 else "v_mfma_f32_16x16x32_bf16"
        base = fr + 4 * len(self.sblks)
        for i, sb in enumerate(self.sblks):
            for j, nb in enumerate(self.nblks):
                a = self.acc0 + (i * len(self.nblks) + j) * nacc
                xf = f"v[{fr+4*i}:{fr+4*i+3}]"
                wf = f"v[{base+4*j}:{base+4*j+3}]"
                acc = f"v[{a}:{a+nacc-1}]"
                if self.transposed:
                    g.e(f"{op} {acc}, {wf}, {xf}, {acc}")
                else:
                    g.e(f"{op} {acc}, {xf}, {wf}, {acc}")

    def run(self):
        g = self.g
        ksub = 16 if self.mf == 32 else 32
        nsub = self.BK // ksub
        D = self.nw_dma + (0 if self.x_resident else self.nx_dma)
        NS = self.nstage
        nacc = 16 if self.mf == 32 else 4
        for r in range(len(self.sblks) * len(self.nblks) * nacc):
            g.e(f"v_mov_b32 v{self.acc0+r}, 0")
        for st in range(min(NS - 1, self.nstep)):
            self.issue_dma(st)
        for k in range(self.nstep):
            issued_after = min(k + NS - 2, self.nstep - 1) - k
            g.e(f"s_waitcnt vmcnt({D*issued_after})")
            g.e("s_barrier")
            if k + NS - 1 < self.nstep:
                self.issue_dma(k + NS - 1)
            if k == 0 and self.extra_at_step0:
                self.extra_at_step0()
            ns = nsub if (self.last_sub is None or k < self.nstep - 1) else self.last_sub
            sets = [self.fr0, self.fr1]
            n = self.reads(k, 0, sets[0])
            for kk in range(ns):
                if kk + 1 < ns:
                    n = self.reads(k, kk + 1, sets[(kk + 1) & 1])
                    g.e(f"s_waitcnt lgkmcnt({n})")
                else:
                    g.e("s_waitcnt lgkmcnt(0)")
                self.mfmas(sets[kk & 1])
        g.e("s_nop 7")
        g.e("s_nop 7")


def wave_id_sgpr(g, sdst):
    g.e("v_lshrrev_b32 v1, 6, v0")
    g.e("s_nop 0")
    g.e(f"v_readfirstlane_b32 s{sdst}, v1")


def emit_row_stats_loads(g, nrows_pow2_log, srd, vrow, vdst):
    pass


def stats_finalize(g, vst, vout_rs, vout_nm, vt):
    g.e(f"v_add_f32 v{vt}, v{vst}, v{vst+2}")
    for t in range(2, 8):
        g.e(f"v_add_f32 v{vt}, v{vt}, v{vst+2*t}")
    g.e(f"v_mul_f32 v{vt}, {f2u(1.0/640.0)}, v{vt}")
    g.e(f"v_add_f32 v{vt+1}, v{vst+1}, v{vst+3}")
    for t in range(2, 8):
        g.e(f"v_add_f32 v{vt+1}, v{vt+1}, v{vst+2*t+1}")
    for t in range(8):
        g.e(f"v_fma_f32 v{vt+2}, v{vst+2*t}, {hex(f2u(1.0/80.0)) if False else 's99'}, -v{vt}")
        g.e(f"v_mul_f32 v{vt+3}, v{vt+2}, v{vt+2}")
        g.e(f"v_fma_f32 v{vt+1}, v{vt+3}, s100, v{vt+1}")
    g.e(f"v_mul_f32 v{vt+1}, {f2u(1.0/640.0)}, v{vt+1}")
    g.e(f"v_add_f32 v{vt+1}, {f2u(1e-5)}, v{vt+1}")
    g.e(f"v_rsq_f32 v{vout_rs}, v{vt+1}")
    g.e("s_nop 0")
    g.e(f"v_mul_f32 v{vout_nm}, v{vout_rs}, v{vt}")
    g.e(f"v_sub_f32 v{vout_nm}, 0, v{vout_nm}")


def set_stats_consts(g):
    g.e(f"s_mov_b32 s99, {hex(f2u(1.0/80.0))}")
    g.e(f"s_mov_b32 s100, {hex(f2u(80.0))}")


def gen_k1(g):
    for L in range(2):
        kernel_begin(g, f"k1_l{L}_kernel")
        g.e(f"s_mov_b32 s101, {L}")
        g.e("s_branch K1_body")
        KERNELS.append((f"k1_l{L}_kernel", 256, 102))
    g.raw(".p2align 8")
    g.lab("K1_body")
    load_kernargs(g)
    g.e("s_cmp_ge_u32 s2, 192")
    g.e("s_cbranch_scc1 K1_end")
    set_stats_consts(g)
    wave_id_sgpr(g, 26)
    g.e("s_waitcnt lgkmcnt(0)")
    g.e(f"s_add_u32 s40, s24, {WS_X2}")
    g.e("s_addc_u32 s41, s25, 0")
    g.e("s_cmp_eq_u32 s101, 0")
    g.e("s_cselect_b32 s40, s4, s40")
    g.e("s_cselect_b32 s41, s5, s41")
    srd_from(g, 28, 40, 41, XB)
    srd_from(g, 32, 6, 7, 640 * 1920 * 2)
    g.e(f"s_mul_i32 s42, s101, {2*WS_ST_V}")
    g.e(f"s_add_u32 s42, s42, {WS_ST}")
    g.e("s_add_u32 s36, s24, s42")
    g.e("s_addc_u32 s37, s25, 0")
    g.e(f"s_mov_b32 s38, {WS_ST_V}")
    g.e("s_mov_b32 s39, 0x00020000")
    srd_ws(g, 44, WS_CSQ, 1920 * 4)
    srd_ws(g, 48, WS_PQ, XB)
    g.e("s_and_b32 s52, s2, 15")
    g.e("s_lshr_b32 s53, s2, 4")
    g.e("s_lshl_b32 s54, s52, 7")
    g.e("v_add_u32 v1, s54, v0")
    g.e("v_lshlrev_b32 v1, 6, v1")
    g.e("v_cmp_gt_u32 vcc, 128, v0")
    g.e("s_and_saveexec_b64 s[56:57], vcc")
    for i in range(4):
        g.e(f"buffer_load_dwordx4 v[{180+4*i}:{183+4*i}], v1, s[36:39], 0 offen offset:{16*i}")
    g.e("s_mov_b64 exec, s[56:57]")
    g.e("s_cmp_ge_u32 s53, 8")
    g.e("s_cbranch_scc1 K1_csq")
    g.e("s_mul_i32 s55, s53, 320")
    g.e("s_add_u32 s55, s55, 2560")
    g.e("v_lshlrev_b32 v2, 4, v0")
    g.e("v_cmp_le_u32 vcc, 20, v0")
    g.e("s_nop 1")
    g.e("v_mov_b32 v3, 2240")
    g.e("v_cndmask_b32 v3, 0, v3, vcc")
    g.e("v_add_u32 v2, v2, v3")
    g.e("s_branch K1_csgo")
    g.lab("K1_csq")
    g.e("s_sub_u32 s55, s53, 8")
    g.e("s_mul_i32 s55, s55, 640")
    g.e("v_lshlrev_b32 v2, 4, v0")
    g.lab("K1_csgo")
    g.e("v_cmp_gt_u32 vcc, 40, v0")
    g.e("s_and_saveexec_b64 s[56:57], vcc")
    g.e("buffer_load_dwordx4 v[196:199], v2, s[44:47], s55 offen")
    g.e("s_mov_b64 exec, s[56:57]")

    g.e("v_and_b32 v1, 63, v0")
    g.e("v_lshrrev_b32 v2, 3, v1")
    g.e("v_and_b32 v3, 7, v1")
    g.e("s_lshl_b32 s58, s26, 5")
    for jj in range(4):
        g.e(f"v_add_u32 v4, s58, v2")
        g.e(f"v_add_u32 v4, {8*jj}, v4")
        g.e("v_lshrrev_b32 v5, 1, v4")
        g.e("v_and_b32 v5, 7, v5")
        g.e("v_xor_b32 v5, v5, v3")
        g.e("v_lshlrev_b32 v5, 4, v5")
        g.e("v_mul_u32_u24 v4, 1280, v4")
        g.e(f"v_add_u32 v{10+jj}, v4, v5")
    g.e("s_mul_i32 s58, s26, 320")
    g.e("s_cmp_ge_u32 s53, 8")
    g.e("s_cselect_b32 s59, 0, 1120")
    for jj in range(5):
        g.e(f"v_add_u32 v4, s58, v1")
        g.e(f"v_add_u32 v4, {64*jj}, v4")
        emit_divmod(g, 4, 5, 6, 20, 1280, 7)
        g.e("v_mul_u32_u24 v5, 3840, v5")
        g.e("v_lshlrev_b32 v7, 4, v6")
        g.e("v_add_u32 v5, v5, v7")
        g.e("v_cmp_le_u32 vcc, 10, v6")
        g.e("v_mov_b32 v7, s59")
        g.e("s_nop 0")
        g.e("v_cndmask_b32 v7, 0, v7, vcc")
        g.e(f"v_add_u32 v{14+jj}, v5, v7")
    g.e("s_mul_i32 s60, s52, 163840")
    g.e("s_mul_i32 s61, s53, 160")
    g.e("s_add_u32 s61, s61, 1280")
    g.e("s_sub_u32 s62, s53, 8")
    g.e("s_mul_i32 s62, s62, 320")
    g.e("s_cmp_ge_u32 s53, 8")
    g.e("s_cselect_b32 s61, s62, s61")
    g.e("s_lshl_b32 s62, s26, 12")
    g.e("s_mul_i32 s63, s26, 5120")
    g.e("v_and_b32 v2, 31, v1")
    g.e("s_lshl_b32 s58, s26, 5")
    g.e("v_add_u32 v2, s58, v2")
    g.e("v_lshrrev_b32 v3, 5, v1")
    g.e("v_lshrrev_b32 v4, 1, v2")
    g.e("v_and_b32 v4, 7, v4")
    for kk in range(4):
        g.e(f"v_add_u32 v5, {2*kk}, v3")
        g.e("v_xor_b32 v5, v5, v4")
        g.e("v_lshlrev_b32 v5, 4, v5")
        g.e("v_lshlrev_b32 v6, 7, v2")
        g.e(f"v_add_u32 v{20+kk}, v5, v6")
    g.e("v_and_b32 v4, 15, v1")
    g.e("v_lshrrev_b32 v5, 2, v4")
    g.e("v_and_b32 v6, 3, v4")
    g.e("v_lshlrev_b32 v7, 3, v3")
    g.e("v_add_u32 v5, v5, v7")
    g.e("v_mul_u32_u24 v5, 320, v5")
    g.e("v_lshrrev_b32 v7, 4, v1")
    g.e("v_and_b32 v7, 1, v7")
    g.e("v_lshlrev_b32 v7, 5, v7")
    g.e("v_add_u32 v5, v5, v7")
    g.e("v_lshlrev_b32 v6, 3, v6")
    g.e("v_add_u32 v5, v5, v6")
    g.e("v_add_u32 v24, 53248, v5")

    ST_L = 0
    CS_L = 1024
    KVR = 4096

    def extra0():
        g.e("v_cmp_gt_u32 vcc, 128, v0")
        g.e("s_and_saveexec_b64 s[56:57], vcc")
        stats_finalize(g, 180, 200, 201, 202)
        g.e("v_lshlrev_b32 v202, 3, v0")
        g.e(f"ds_write_b64 v202, v[200:201] offset:{ST_L}")
        g.e("s_mov_b64 exec, s[56:57]")
        g.e("v_cmp_gt_u32 vcc, 40, v0")
        g.e("s_and_saveexec_b64 s[56:57], vcc")
        g.e("v_lshlrev_b32 v202, 4, v0")
        g.e(f"ds_write_b128 v202, v[196:199] offset:{CS_L}")
        g.e("s_mov_b64 exec, s[56:57]")

    common = dict(mf=32, BS=128, BN=160, BK=64, nstep=10, nstage=3, xb=4096, xsz=16384, wb=53248, wsz=20480,
                  sblks=[0], nblks=[0, 1, 2, 3, 4], acc0=100, fr0=40, fr1=64,
                  vx_dma=10, vw_dma=14, nx_dma=4, nw_dma=5, vx_rd=20, vw_rd=24,
                  s_xoff=60, s_woff=61, s_m0x=62, s_m0w=63, xstep_bytes=128, wstep_bytes=64 * 3840,
                  w_imm_nb=lambda i, nb: (24, 64 * nb), extra_at_step0=extra0)
    g.e("s_cmp_ge_u32 s53, 8")
    g.e("s_cbranch_scc1 K1_qpath")

    Loop(g, transposed=False, **common).run()
    g.e("s_waitcnt vmcnt(0) lgkmcnt(0)")
    g.e("s_barrier")
    g.e("v_and_b32 v1, 63, v0")
    g.e("v_and_b32 v2, 31, v1")
    g.e("v_lshrrev_b32 v3, 5, v1")
    g.e("v_mov_b32 v4, 0")
    g.e("v_lshlrev_b32 v5, 2, v0")
    for i in range(21):
        g.e(f"ds_write_b32 v5, v4 offset:{KVR+1024*i}")
    g.e("s_lshl_b32 s58, s26, 5")
    g.e("v_lshlrev_b32 v4, 2, v3")
    g.e("v_add_u32 v4, s58, v4")
    g.e("v_lshlrev_b32 v4, 3, v4")
    for gg in range(4):
        g.e(f"ds_read_b128 v[{200+8*gg}:{203+8*gg}], v4 offset:{ST_L+64*gg}")
        g.e(f"ds_read_b128 v[{204+8*gg}:{207+8*gg}], v4 offset:{ST_L+64*gg+16}")
    g.e("v_lshlrev_b32 v5, 2, v2")
    for nb in range(5):
        g.e(f"ds_read_b32 v{232+nb}, v5 offset:{CS_L+128*nb}")
    g.e("s_waitcnt lgkmcnt(0)")
    g.e("s_barrier")
    g.e(f"s_mov_b32 s64, {hex(f2u(LOG2E))}")
    g.e(f"s_mov_b32 s65, {hex(f2u(1e-6))}")
    for nb in range(5):
        for j in range(16):
            a = 100 + 16 * nb + j
            rs = 200 + 2 * j
            g.e(f"v_mul_f32 v4, v{rs+1}, v{232+nb}")
            g.e(f"v_fma_f32 v{a}, v{rs}, v{a}, v4")
            if nb <= 2:
                g.e(f"v_mul_f32 v5, s64, v{a}")
                g.e("v_exp_f32 v5, v5")
                g.e(f"v_add_f32 v6, 1.0, v{a}")
                g.e(f"v_cmp_lt_f32 vcc, 0, v{a}")
                g.e("s_nop 1")
                g.e("v_cndmask_b32 v5, v5, v6, vcc")
                if nb < 2:
                    g.e(f"v_add_f32 v{a}, s65, v5")
                else:
                    g.e("v_add_f32 v5, s65, v5")
                    g.e("v_cmp_gt_u32 vcc, 16, v2")
                    g.e("s_nop 1")
                    g.e(f"v_cndmask_b32 v{a}, v{a}, v5, vcc")
    for nb in range(3):
        g.e(f"v_add_f32 v{240+nb}, v{100+16*nb}, v{101+16*nb}")
        for j in range(2, 16):
            g.e(f"v_add_f32 v{240+nb}, v{240+nb}, v{100+16*nb+j}")
    for nb in range(5):
        for p in range(8):
            g.e(f"v_cvt_pk_bf16_f32 v{40+8*nb+p}, v{100+16*nb+2*p}, v{101+16*nb+2*p}")
    g.e("s_nop 1")
    pairs = [(0, 2), (0, 3), (1, 3), (1, 4), (2, 4)]
    for pi in range(5):
        for r in range(16):
            g.e(f"v_mov_b32 v{100+16*pi+r}, 0")
    g.e("s_nop 1")
    for pi, (kb, vb) in enumerate(pairs):
        a = 100 + 16 * pi
        for gp in range(2):
            g.e(f"v_mfma_f32_32x32x16_bf16 v[{a}:{a+15}], v[{40+8*kb+4*gp}:{43+8*kb+4*gp}], v[{40+8*vb+4*gp}:{43+8*vb+4*gp}], v[{a}:{a+15}]")
    g.e("s_nop 7")
    g.e("s_nop 7")
    g.e("v_lshlrev_b32 v5, 2, v1")
    for pi in range(5):
        for r in range(16):
            g.e(f"ds_add_f32 v5, v{100+16*pi+r} offset:{KVR+(16*pi+r)*256}")
    for nb in range(3):
        g.e(f"ds_add_f32 v5, v{240+nb} offset:{KVR+20480+256*nb}")
    g.e("s_waitcnt lgkmcnt(0)")
    g.e("s_barrier")
    g.e(f"s_mul_i32 s42, s101, {WS_KV_L}")
    g.e(f"s_add_u32 s42, s42, {WS_KV}")
    g.e("s_add_u32 s36, s24, s42")
    g.e("s_addc_u32 s37, s25, 0")
    g.e(f"s_mov_b32 s38, {WS_KV_L}")
    g.e("s_mov_b32 s39, 0x00020000")
    g.e("s_lshl_b32 s42, s53, 14")
    for i in range(7):
        g.e(f"v_add_u32 v4, {256*i}, v0")
        if i == 6:
            g.e("v_cmp_gt_u32 vcc, 1680, v4")
            g.e("s_and_saveexec_b64 s[56:57], vcc")
        emit_divmod(g, 4, 5, 6, 420, 1792, 7)
        emit_divmod(g, 6, 8, 9, 20, 420, 7)
        g.e("v_mul_u32_u24 v10, 20, v5")
        g.e("v_add_u32 v11, v10, v8")
        g.e("v_add_u32 v12, v10, v9")
        g.e("v_add_u32 v12, 80, v12")
        g.e("v_add_u32 v13, v10, v9")
        g.e("v_cmp_eq_u32 vcc, 20, v8")
        g.e("s_nop 1")
        g.e("v_cndmask_b32 v11, v11, v13, vcc")
        g.e("v_lshrrev_b32 v14, 5, v11")
        g.e("v_lshrrev_b32 v15, 5, v12")
        g.e("v_add_u32 v14, v14, v15")
        g.e("v_subrev_u32 v14, 2, v14")
        g.e("v_and_b32 v15, 31, v11")
        g.e("v_lshrrev_b32 v16, 3, v15")
        g.e("v_lshlrev_b32 v16, 2, v16")
        g.e("v_and_b32 v17, 3, v15")
        g.e("v_add_u32 v16, v16, v17")
        g.e("v_lshlrev_b32 v14, 4, v14")
        g.e("v_add_u32 v14, v14, v16")
        g.e("v_lshlrev_b32 v14, 8, v14")
        g.e("v_lshrrev_b32 v16, 2, v15")
        g.e("v_and_b32 v16, 1, v16")
        g.e("v_lshlrev_b32 v16, 5, v16")
        g.e("v_and_b32 v17, 31, v12")
        g.e("v_add_u32 v16, v16, v17")
        g.e("v_lshlrev_b32 v16, 2, v16")
        g.e("v_add_u32 v14, v14, v16")
        g.e("v_lshrrev_b32 v16, 5, v11")
        g.e("v_lshlrev_b32 v16, 8, v16")
        g.e("v_lshlrev_b32 v17, 2, v15")
        g.e("v_add_u32 v16, v16, v17")
        g.e("v_add_u32 v16, 20480, v16")
        g.e("v_cndmask_b32 v14, v14, v16, vcc")
        g.e(f"ds_read_b32 v18, v14 offset:{KVR}")
        g.e(f"ds_read_b32 v19, v16 offset:{KVR+128}")
        g.e("v_lshlrev_b32 v20, 12, v5")
        g.e("v_lshlrev_b32 v21, 7, v9")
        g.e("v_lshlrev_b32 v22, 2, v8")
        g.e("v_add_u32 v21, v21, v22")
        g.e("v_lshlrev_b32 v22, 2, v9")
        g.e("v_add_u32 v22, 2560, v22")
        g.e("v_cndmask_b32 v21, v21, v22, vcc")
        g.e("v_add_u32 v20, v20, v21")
        g.e("s_waitcnt lgkmcnt(0)")
        g.e("v_add_f32 v19, v18, v19")
        g.e("v_cndmask_b32 v18, v18, v19, vcc")
        g.e("buffer_atomic_add_f32 v18, v20, s[36:39], s42 offen")
        if i == 6:
            g.e("s_mov_b64 exec, s[56:57]")
    g.e("s_endpgm")

    g.lab("K1_qpath")
    Loop(g, transposed=True, **common).run()
    g.e("s_waitcnt vmcnt(0) lgkmcnt(0)")
    g.e("v_and_b32 v1, 63, v0")
    g.e("v_and_b32 v2, 31, v1")
    g.e("v_lshrrev_b32 v3, 5, v1")
    g.e("s_lshl_b32 s58, s26, 5")
    g.e("v_add_u32 v2, s58, v2")
    g.e("v_lshlrev_b32 v4, 3, v2")
    g.e(f"ds_read_b64 v[200:201], v4 offset:{ST_L}")
    g.e("v_lshlrev_b32 v5, 4, v3")
    g.e("s_lshl_b32 s54, s52, 7")
    g.e("v_add_u32 v6, s54, v2")
    g.e("v_mul_u32_u24 v6, 1280, v6")
    g.e("s_sub_u32 s55, s53, 8")
    g.e("s_mul_i32 s55, s55, 320")
    g.e("v_lshlrev_b32 v7, 3, v3")
    g.e("v_add_u32 v6, v6, v7")
    g.e("v_add_u32 v6, s55, v6")
    g.e(f"s_mov_b32 s64, {hex(f2u(LOG2E))}")
    g.e(f"s_mov_b32 s65, {hex(f2u(1e-6))}")
    for nb in range(5):
        for gg in range(4):
            g.e(f"ds_read_b128 v[{204+4*gg}:{207+4*gg}], v5 offset:{CS_L+128*nb+32*gg}")
        g.e("s_waitcnt lgkmcnt(0)")
        for j in range(16):
            a = 100 + 16 * nb + j
            g.e(f"v_mul_f32 v8, v201, v{204+j}")
            g.e(f"v_fma_f32 v{a}, v200, v{a}, v8")
            g.e(f"v_mul_f32 v8, s64, v{a}")
            g.e("v_exp_f32 v8, v8")
            g.e(f"v_add_f32 v9, 1.0, v{a}")
            g.e(f"v_cmp_lt_f32 vcc, 0, v{a}")
            g.e("s_nop 1")
            g.e("v_cndmask_b32 v8, v8, v9, vcc")
            g.e(f"v_add_f32 v{a}, s65, v8")
        for gg in range(4):
            a = 100 + 16 * nb + 4 * gg
            g.e(f"v_cvt_pk_bf16_f32 v{10+2*gg}, v{a}, v{a+1}")
            g.e(f"v_cvt_pk_bf16_f32 v{11+2*gg}, v{a+2}, v{a+3}")
        for gg in range(4):
            g.e(f"buffer_store_dwordx2 v[{10+2*gg}:{11+2*gg}], v6, s[48:51], 0 offen offset:{64*nb+16*gg}")
        g.e("s_nop 1")
    g.lab("K1_end")
    g.e("s_endpgm")


def gen_k3(g):
    for L in range(2):
        kernel_begin(g, f"k3_l{L}_kernel")
        g.e(f"s_mov_b32 s101, {L}")
        g.e("s_branch K3_body")
        KERNELS.append((f"k3_l{L}_kernel", 256, 102))
    g.raw(".p2align 8")
    g.lab("K3_body")
    load_kernargs(g)
    g.e("s_cmp_ge_u32 s2, 216")
    g.e("s_cbranch_scc1 K3_end")
    set_stats_consts(g)
    wave_id_sgpr(g, 26)
    g.e("s_waitcnt lgkmcnt(0)")
    g.e(f"s_mul_i32 s42, s101, {WS_X3-WS_X1}")
    g.e(f"s_add_u32 s40, s24, s42")
    g.e("s_addc_u32 s41, s25, 0")
    srd_from(g, 28, 40, 41, XB)
    srd_from(g, 32, 12, 13, 640 * 1728 * 2)
    g.e(f"s_mul_i32 s42, s101, {2*WS_ST_V}")
    g.e(f"s_add_u32 s42, s42, {WS_ST+WS_ST_V}")
    g.e("s_add_u32 s36, s24, s42")
    g.e("s_addc_u32 s37, s25, 0")
    g.e(f"s_mov_b32 s38, {WS_ST_V}")
    g.e("s_mov_b32 s39, 0x00020000")
    srd_ws(g, 44, WS_CS1, 1728 * 4)
    srd_ws(g, 48, WS_H, HB)
    srd_from(g, 68, 14, 15, 1728 * 2)
    g.e("s_and_b32 s52, s2, 7")
    g.e("s_lshr_b32 s53, s2, 3")
    g.e("s_lshl_b32 s54, s52, 8")
    g.e("v_add_u32 v1, s54, v0")
    g.e("v_lshlrev_b32 v1, 6, v1")
    for i in range(4):
        g.e(f"buffer_load_dwordx4 v[{180+4*i}:{183+4*i}], v1, s[36:39], 0 offen offset:{16*i}")
    g.e("s_lshl_b32 s55, s53, 8")
    g.e("v_lshlrev_b32 v2, 4, v0")
    g.e("v_cmp_gt_u32 vcc, 16, v0")
    g.e("s_and_saveexec_b64 s[56:57], vcc")
    g.e("buffer_load_dwordx4 v[196:199], v2, s[44:47], s55 offen")
    g.e("s_mov_b64 exec, s[56:57]")
    g.e("s_lshl_b32 s55, s53, 7")
    g.e("v_cmp_gt_u32 vcc, 8, v0")
    g.e("s_and_saveexec_b64 s[56:57], vcc")
    g.e("buffer_load_dwordx4 v[224:227], v2, s[68:71], s55 offen")
    g.e("s_mov_b64 exec, s[56:57]")
    g.e("v_and_b32 v1, 63, v0")
    g.e("v_lshrrev_b32 v2, 3, v1")
    g.e("v_and_b32 v3, 7, v1")
    g.e("s_lshl_b32 s58, s26, 6")
    for jj in range(8):
        g.e("v_add_u32 v4, s58, v2")
        g.e(f"v_add_u32 v4, {8*jj}, v4")
        g.e("v_lshrrev_b32 v5, 1, v4")
        g.e("v_and_b32 v5, 7, v5")
        g.e("v_xor_b32 v5, v5, v3")
        g.e("v_lshlrev_b32 v5, 4, v5")
        g.e("v_mul_u32_u24 v4, 1280, v4")
        g.e(f"v_add_u32 v{10+jj}, v4, v5")
    g.e("s_lshl_b32 s58, s26, 4")
    for jj in range(2):
        g.e("v_add_u32 v4, s58, v2")
        g.e(f"v_add_u32 v4, {8*jj}, v4")
        g.e("v_lshrrev_b32 v5, 1, v4")
        g.e("v_and_b32 v5, 1, v5")
        g.e("v_lshlrev_b32 v5, 2, v5")
        g.e("v_xor_b32 v5, v5, v3")
        g.e("v_lshlrev_b32 v5, 4, v5")
        g.e("v_mul_u32_u24 v4, 3456, v4")
        g.e(f"v_add_u32 v{18+jj}, v4, v5")
    g.e("s_mul_i32 s60, s52, 327680")
    g.e("s_lshl_b32 s61, s53, 7")
    g.e("s_lshl_b32 s62, s26, 13")
    g.e("s_lshl_b32 s63, s26, 11")
    g.e("v_lshrrev_b32 v3, 5, v1")
    for sb in range(2):
        g.e("v_and_b32 v2, 31, v1")
        g.e("s_lshl_b32 s58, s26, 6")
        g.e("v_add_u32 v2, s58, v2")
        g.e(f"v_add_u32 v2, {32*sb}, v2")
        g.e("v_lshrrev_b32 v4, 1, v2")
        g.e("v_and_b32 v4, 7, v4")
        for kk in range(4):
            g.e(f"v_add_u32 v5, {2*kk}, v3")
            g.e("v_xor_b32 v5, v5, v4")
            g.e("v_lshlrev_b32 v5, 4, v5")
            g.e("v_lshlrev_b32 v6, 7, v2")
            g.e(f"v_add_u32 v{20+4*sb+kk}, v5, v6")
            g.e(f"v_add_u32 v{32+4*sb+kk}, 0x8000, v{20+4*sb+kk}")
    WB3 = 4096 + 3 * 32768
    g.e("v_and_b32 v4, 15, v1")
    g.e("v_lshrrev_b32 v5, 2, v4")
    g.e("v_and_b32 v6, 3, v4")
    g.e("v_lshlrev_b32 v7, 3, v3")
    g.e("v_add_u32 v7, v5, v7")
    g.e("v_lshlrev_b32 v7, 7, v7")
    g.e("v_lshrrev_b32 v8, 4, v1")
    g.e("v_and_b32 v8, 1, v8")
    g.e("v_lshlrev_b32 v8, 5, v8")
    g.e("v_add_u32 v7, v7, v8")
    g.e("v_lshlrev_b32 v6, 3, v6")
    g.e("v_add_u32 v7, v7, v6")
    g.e(f"v_add_u32 v7, {WB3}, v7")
    g.e("v_lshrrev_b32 v8, 1, v5")
    g.e("v_and_b32 v8, 1, v8")
    g.e("v_lshlrev_b32 v8, 6, v8")
    g.e("v_add_u32 v28, v7, v8")
    g.e("v_xor_b32 v8, 64, v8")
    g.e("v_add_u32 v29, v7, v8")

    ST_L = 0
    CS_L = 2048
    BI_L = 2048 + 256

    def extra0():
        stats_finalize(g, 180, 200, 201, 202)
        g.e("v_lshlrev_b32 v202, 3, v0")
        g.e(f"ds_write_b64 v202, v[200:201] offset:{ST_L}")
        g.e("v_cmp_gt_u32 vcc, 16, v0")
        g.e("s_and_saveexec_b64 s[56:57], vcc")
        g.e("v_lshlrev_b32 v202, 4, v0")
        g.e(f"ds_write_b128 v202, v[196:199] offset:{CS_L}")
        g.e("s_mov_b64 exec, s[56:57]")
        g.e("v_cmp_gt_u32 vcc, 8, v0")
        g.e("s_and_saveexec_b64 s[56:57], vcc")
        for d in range(4):
            g.e(f"v_lshlrev_b32 v{208+2*d}, 16, v{224+d}")
            g.e(f"v_and_b32 v{209+2*d}, 0xffff0000, v{224+d}")
        g.e("v_lshlrev_b32 v202, 5, v0")
        g.e(f"ds_write_b128 v202, v[208:211] offset:{BI_L}")
        g.e(f"ds_write_b128 v202, v[212:215] offset:{BI_L+16}")
        g.e("s_mov_b64 exec, s[56:57]")

    Loop(g, mf=32, BS=256, BN=64, BK=64, nstep=10, nstage=3, xb=4096, xsz=32768, wb=WB3, wsz=8192,
         sblks=[0, 1], nblks=[0, 1], transposed=True, acc0=100, fr0=40, fr1=60,
         vx_dma=10, vw_dma=18, nx_dma=8, nw_dma=2, vx_rd=20, vw_rd=28,
         s_xoff=60, s_woff=61, s_m0x=62, s_m0w=63, xstep_bytes=128, wstep_bytes=64 * 3456,
         w_imm_nb=lambda i, nb: (28 + nb, 0), extra_at_step0=extra0, vx_hi=32, x_hi_delta=32768).run()
    g.e("s_waitcnt vmcnt(0) lgkmcnt(0)")
    g.e("v_and_b32 v1, 63, v0")
    g.e("v_lshrrev_b32 v3, 5, v1")
    g.e("v_lshlrev_b32 v5, 4, v3")
    kk = 2 * 0.7978845608028654 * LOG2E
    g.e(f"s_mov_b32 s64, {hex(f2u(-kk))}")
    g.e(f"s_mov_b32 s65, {hex(f2u(-kk*0.044715))}")
    for nb in range(2):
        for gg in range(4):
            g.e(f"ds_read_b128 v[{204+4*gg}:{207+4*gg}], v5 offset:{CS_L+128*nb+32*gg}")
            g.e(f"ds_read_b128 v[{220+4*gg}:{223+4*gg}], v5 offset:{BI_L+128*nb+32*gg}")
        for sb in range(2):
            g.e("v_and_b32 v2, 31, v1")
            g.e("s_lshl_b32 s58, s26, 6")
            g.e("v_add_u32 v2, s58, v2")
            g.e(f"v_add_u32 v2, {32*sb}, v2")
            g.e("v_lshlrev_b32 v4, 3, v2")
            g.e(f"ds_read_b64 v[200:201], v4 offset:{ST_L}")
            g.e("s_lshl_b32 s54, s52, 8")
            g.e("v_add_u32 v6, s54, v2")
            g.e("v_mul_u32_u24 v6, 3456, v6")
            g.e("s_lshl_b32 s55, s53, 7")
            g.e("v_lshlrev_b32 v7, 3, v3")
            g.e("v_add_u32 v6, v6, v7")
            g.e("v_add_u32 v6, s55, v6")
            g.e("s_waitcnt lgkmcnt(0)")
            for j in range(16):
                a = 100 + (sb * 2 + nb) * 16 + j
                g.e(f"v_fma_f32 v8, v201, v{204+j}, v{220+j}")
                g.e(f"v_fma_f32 v{a}, v200, v{a}, v8")
                g.e(f"v_mul_f32 v8, v{a}, v{a}")
                g.e("v_mov_b32 v9, s64")
                g.e("v_fma_f32 v8, v8, s65, v9")
                g.e(f"v_mul_f32 v8, v8, v{a}")
                g.e("v_exp_f32 v8, v8")
                g.e("s_nop 0")
                g.e("v_add_f32 v8, 1.0, v8")
                g.e("v_rcp_f32 v8, v8")
                g.e("s_nop 0")
                g.e(f"v_mul_f32 v{a}, v{a}, v8")
            for gg in range(4):
                a = 100 + (sb * 2 + nb) * 16 + 4 * gg
                g.e(f"v_cvt_pk_bf16_f32 v{10+2*gg}, v{a}, v{a+1}")
                g.e(f"v_cvt_pk_bf16_f32 v{11+2*gg}, v{a+2}, v{a+3}")
            for gg in range(4):
                g.e(f"buffer_store_dwordx2 v[{10+2*gg}:{11+2*gg}], v6, s[48:51], 0 offen offset:{64*nb+16*gg}")
            g.e("s_nop 1")
    g.lab("K3_end")
    g.e("s_endpgm")


def gen_c_common_addr(g, ld_w):
    pass


def gen_k24(g, which):
    isk2 = which == 2
    name = f"k{which}"
    for L in range(2):
        kernel_begin(g, f"{name}_l{L}_kernel")
        g.e(f"s_mov_b32 s101, {L}")
        g.e(f"s_branch K{which}_body")
        KERNELS.append((f"{name}_l{L}_kernel", 256, 102))
    g.raw(".p2align 8")
    g.lab(f"K{which}_body")
    load_kernargs(g)
    g.e("s_cmp_ge_u32 s2, 256")
    g.e(f"s_cbranch_scc1 K{which}_end")
    wave_id_sgpr(g, 26)
    g.e("s_waitcnt lgkmcnt(0)")
    g.e("s_and_b32 s52, s2, 31")
    g.e("s_lshr_b32 s53, s2, 5")
    if isk2:
        g.e(f"s_add_u32 s40, s24, {WS_X2}")
        g.e("s_addc_u32 s41, s25, 0")
        g.e("s_cmp_eq_u32 s101, 0")
        g.e("s_cselect_b32 s40, s4, s40")
        g.e("s_cselect_b32 s41, s5, s41")
        srd_from(g, 36, 40, 41, XB)
        g.e(f"s_mul_i32 s42, s101, {WS_X3-WS_X1}")
        g.e("s_add_u32 s40, s24, s42")
        g.e("s_addc_u32 s41, s25, 0")
        srd_from(g, 44, 40, 41, XB)
        g.e(f"s_mul_i32 s42, s101, {2*WS_ST_V}")
        g.e(f"s_add_u32 s42, s42, {WS_ST+WS_ST_V}")
        srd_from(g, 32, 8, 9, 640 * 640 * 2)
        srd_ws(g, 28, WS_PQ, XB)
        g.e(f"s_mul_i32 s43, s101, {WS_KV_L}")
        g.e(f"s_add_u32 s43, s43, {WS_KV}")
        g.e("s_add_u32 s68, s24, s43")
        g.e("s_addc_u32 s69, s25, 0")
        g.e(f"s_mov_b32 s70, {WS_KV_L}")
        g.e("s_mov_b32 s71, 0x00020000")
    else:
        g.e(f"s_mul_i32 s42, s101, {WS_X3-WS_X1}")
        g.e("s_add_u32 s40, s24, s42")
        g.e("s_addc_u32 s41, s25, 0")
        srd_from(g, 36, 40, 41, XB)
        g.e(f"s_add_u32 s40, s24, {WS_X2}")
        g.e("s_addc_u32 s41, s25, 0")
        g.e("s_cmp_eq_u32 s101, 0")
        g.e("s_cselect_b32 s40, s40, s20")
        g.e("s_cselect_b32 s41, s41, s21")
        srd_from(g, 44, 40, 41, XB)
        g.e(f"s_mov_b32 s42, {WS_ST+2*WS_ST_V}")
        srd_from(g, 32, 16, 17, 1728 * 640 * 2)
        srd_ws(g, 28, WS_H, HB)
        srd_from(g, 68, 18, 19, 640 * 2)
    g.e("s_add_u32 s48, s24, s42")
    g.e("s_addc_u32 s49, s25, 0")
    g.e(f"s_mov_b32 s50, {WS_ST_V}")
    g.e("s_mov_b32 s51, 0x00020000")

    g.e("v_and_b32 v1, 63, v0")
    g.e("v_and_b32 v2, 15, v1")
    g.e("v_lshrrev_b32 v3, 4, v1")
    g.e("s_lshl_b32 s54, s52, 6")
    g.e("s_lshl_b32 s58, s26, 4")
    g.e("s_add_u32 s54, s54, s58")
    g.e("v_add_u32 v4, s54, v2")
    g.e("v_mul_u32_u24 v5, 1280, v4")
    g.e("s_mul_i32 s55, s53, 160")
    g.e("v_lshlrev_b32 v6, 3, v3")
    g.e("v_add_u32 v5, v5, v6")
    g.e("v_add_u32 v30, s55, v5")
    for nb in range(5):
        g.e(f"buffer_load_dwordx2 v[{220+2*nb}:{221+2*nb}], v30, s[36:39], 0 offen offset:{32*nb}")
    if not isk2:
        g.e("v_add_u32 v6, s55, v6")
        for nb in range(5):
            g.e(f"buffer_load_dwordx2 v[{230+2*nb}:{231+2*nb}], v6, s[68:71], 0 offen offset:{32*nb}")

    XSZ = 16384
    WSZ = 20480
    if isk2:
        XB_L = 0
        WB_L = 5 * XSZ
        NST = 3
    else:
        XB_L = 0
        NST = 4
        WB_L = NST * XSZ
    ldx = 1280 if isk2 else 3456
    if not isk2:
        g.e("v_lshrrev_b32 v4, 4, v1")
        g.e("v_and_b32 v5, 15, v1")
        g.e("s_lshl_b32 s58, s26, 4")
        for jj in range(4):
            g.e("v_add_u32 v6, s58, v4")
            g.e(f"v_add_u32 v6, {4*jj}, v6")
            g.e("v_and_b32 v7, 15, v6")
            g.e("v_xor_b32 v7, v7, v5")
            g.e("v_lshlrev_b32 v7, 4, v7")
            g.e(f"v_mul_u32_u24 v6, {ldx}, v6")
            g.e(f"v_add_u32 v{10+jj}, v6, v7")
    g.e("s_mul_i32 s58, s26, 320")
    for jj in range(5):
        g.e("v_add_u32 v4, s58, v1")
        g.e(f"v_add_u32 v4, {64*jj}, v4")
        emit_divmod(g, 4, 5, 6, 10, 1280, 7)
        g.e("v_and_b32 v7, 0x73, v5")
        g.e("v_and_b32 v8, 4, v5")
        g.e("v_lshlrev_b32 v8, 1, v8")
        g.e("v_or_b32 v7, v7, v8")
        g.e("v_and_b32 v8, 8, v5")
        g.e("v_lshrrev_b32 v8, 1, v8")
        g.e("v_or_b32 v7, v7, v8")
        g.e("v_mul_u32_u24 v7, 1280, v7")
        g.e("v_lshlrev_b32 v6, 4, v6")
        g.e(f"v_add_u32 v{14+jj}, v7, v6")
    g.e(f"s_mul_i32 s60, s52, {64*ldx}")
    g.e("s_mul_i32 s61, s53, 160")
    g.e("s_lshl_b32 s62, s26, 12")
    g.e("s_mul_i32 s63, s26, 5120")
    g.e("s_lshl_b32 s58, s26, 4")
    g.e("v_add_u32 v4, s58, v2")
    g.e("v_and_b32 v5, 15, v4")
    for kk in range(4):
        g.e(f"v_add_u32 v6, {4*kk}, v3")
        g.e("v_xor_b32 v6, v6, v5")
        g.e("v_lshlrev_b32 v6, 4, v6")
        g.e("v_lshlrev_b32 v7, 8, v4")
        g.e(f"v_add_u32 v{20+kk}, v6, v7")
        g.e(f"v_add_u32 v{32+kk}, 0x8000, v{20+kk}")
    g.e("v_lshrrev_b32 v4, 2, v2")
    g.e("v_and_b32 v5, 3, v2")
    g.e("v_lshrrev_b32 v6, 1, v3")
    g.e("v_lshlrev_b32 v6, 4, v6")
    g.e("v_and_b32 v7, 1, v3")
    g.e("v_lshlrev_b32 v7, 2, v7")
    g.e("v_add_u32 v4, v4, v6")
    g.e("v_add_u32 v4, v4, v7")
    g.e("v_mul_u32_u24 v4, 160, v4")
    g.e("v_lshlrev_b32 v5, 3, v5")
    g.e("v_add_u32 v4, v4, v5")
    g.e(f"v_add_u32 v24, {WB_L}, v4")
    g.e(f"v_add_u32 v25, {WB_L+40960}, v4")

    if isk2:
        g.e("v_mov_b32 v31, 0x3f800000")
        hb = 8
        g.e("s_lshl_b32 s58, s26, 15")
        g.e("v_lshlrev_b32 v4, 7, v2")
        g.e("v_lshlrev_b32 v5, 5, v3")
        g.e("v_add_u32 v4, v4, v5")
        g.e("v_add_u32 v4, s58, v4")
        g.e("s_lshl_b32 s54, s52, 6")
        g.e("v_add_u32 v5, s54, v2")
        g.e("v_mul_u32_u24 v5, 1280, v5")
        g.e("v_lshlrev_b32 v6, 4, v3")
        g.e("v_add_u32 v5, v5, v6")
        g.e("s_mul_i32 s59, s26, 320")
        g.e("v_add_u32 v5, s59, v5")
        g.e("v_cmp_gt_u32 s[72:73], 3, v3")
        g.e("v_cmp_gt_u32 s[74:75], 2, v3")
        for hh in range(hb):
            for b in range(2):
                g.e(f"buffer_load_dwordx4 v[{40+8*b}:{43+8*b}], v4, s[68:71], 0 offen offset:{4096*0+2048*b}" if hh == 0 and False else
                    f"buffer_load_dwordx4 v[{40+8*b}:{43+8*b}], v4, s[68:71], 0 offen offset:{2048*b}")
                g.e(f"buffer_load_dwordx4 v[{44+8*b}:{47+8*b}], v4, s[68:71], 0 offen offset:{2048*b+16}")
            for rb in range(4):
                g.e(f"s_mov_b32 s59, {16*rb*1280}")
                g.e(f"buffer_load_dwordx4 v[{60+4*rb}:{63+4*rb}], v5, s[28:31], s59 offen")
            g.e("s_waitcnt vmcnt(0)")
            for b in range(2):
                for p in range(4):
                    g.e(f"v_cvt_pk_bf16_f32 v{80+4*b+p}, v{40+8*b+2*p}, v{41+8*b+2*p}")
            for rb in range(4):
                r = 60 + 4 * rb
                g.e(f"v_cndmask_b32 v{r}, 0, v{r}, s[72:73]")
                g.e(f"v_cndmask_b32 v{r+1}, 0, v{r+1}, s[72:73]")
                g.e(f"v_cndmask_b32 v{r+2}, 0, v{r+2}, s[74:75]")
                g.e(f"v_cndmask_b32 v{r+3}, 0, v{r+3}, s[74:75]")
            for rb in range(4):
                for b in range(2):
                    a = 100 + 8 * rb + 4 * b
                    for r in range(4):
                        g.e(f"v_mov_b32 v{a+r}, 0")
            g.e("s_nop 1")
            for rb in range(4):
                for b in range(2):
                    a = 100 + 8 * rb + 4 * b
                    g.e(f"v_mfma_f32_16x16x32_bf16 v[{a}:{a+3}], v[{80+4*b}:{83+4*b}], v[{60+4*rb}:{63+4*rb}], v[{a}:{a+3}]")
            g.e("s_nop 7")
            g.e("s_nop 1")
            g.e("v_lshlrev_b32 v6, 2, v2")
            g.e("v_add_u32 v6, 64, v6")
            for rb in range(4):
                g.e(f"ds_bpermute_b32 v{140+rb}, v6, v{100+8*rb+4}")
            g.e("s_waitcnt lgkmcnt(0)")
            for rb in range(4):
                g.e(f"v_add_f32 v{140+rb}, {f2u(1e-6)}, v{140+rb}")
                g.e(f"v_rcp_f32 v{140+rb}, v{140+rb}")
            g.e("s_nop 0")
            g.e(f"s_mul_i32 s59, s26, 160")
            g.e(f"s_add_u32 s59, s59, {20*hh}")
            for b in range(2):
                g.e("v_lshlrev_b32 v7, 2, v3")
                g.e("v_add_u32 v7, s59, v7")
                if b == 1:
                    g.e("v_add_u32 v7, 16, v7")
                g.e("v_lshrrev_b32 v8, 7, v7")
                g.e("v_lshlrev_b32 v8, 14, v8")
                g.e("v_and_b32 v9, 127, v7")
                g.e("v_lshrrev_b32 v9, 3, v9")
                g.e("v_and_b32 v7, 7, v7")
                g.e("v_lshlrev_b32 v7, 1, v7")
                g.e("v_add_u32 v8, v8, v7")
                for rb in range(4):
                    a = 100 + 8 * rb + 4 * b
                    for r in range(4):
                        g.e(f"v_mul_f32 v{a+r}, v{a+r}, v{140+rb}")
                    g.e(f"v_cvt_pk_bf16_f32 v{150}, v{a}, v{a+1}")
                    g.e(f"v_cvt_pk_bf16_f32 v{151}, v{a+2}, v{a+3}")
                    g.e("v_xor_b32 v152, v9, v2")
                    g.e("v_lshlrev_b32 v152, 4, v152")
                    g.e("v_lshlrev_b32 v153, 8, v2")
                    g.e("v_add3_u32 v152, v152, v153, v8")
                    if b == 1:
                        g.e("v_cmp_eq_u32 vcc, 0, v3")
                        g.e("s_and_saveexec_b64 s[56:57], vcc")
                    g.e(f"ds_write_b64 v152, v[150:151] offset:{16*rb*256}")
                    if b == 1:
                        g.e("s_mov_b64 exec, s[56:57]")
            if hh < hb - 1:
                g.e("v_add_u32 v4, 4096, v4")
                g.e("v_add_u32 v5, 40, v5")
        g.e("s_waitcnt lgkmcnt(0)")

    nstep = 5 if isk2 else 14
    Loop(g, mf=16, BS=64, BN=80, BK=128, nstep=nstep, nstage=NST, xb=XB_L, xsz=XSZ, wb=WB_L, wsz=WSZ,
         sblks=[0], nblks=[0, 1, 2, 3, 4], transposed=True, acc0=100, fr0=40, fr1=64,
         vx_dma=10, vw_dma=14, nx_dma=4, nw_dma=5, vx_rd=20, vw_rd=24,
         s_xoff=60, s_woff=61, s_m0x=62, s_m0w=63, xstep_bytes=256, wstep_bytes=128 * 1280,
         x_resident=isk2, last_sub=(None if isk2 else 2),
         w_imm_nb=lambda i, nb: (24, 32 * nb), vw_hi=25, w_hi_delta=40960, vx_hi=32, x_hi_delta=32768).run()
    g.e("s_waitcnt vmcnt(0) lgkmcnt(0)")
    for nb in range(5):
        for p in range(2):
            g.e(f"v_lshlrev_b32 v{40+4*nb+2*p}, 16, v{220+2*nb+p}")
            g.e(f"v_and_b32 v{41+4*nb+2*p}, 0xffff0000, v{220+2*nb+p}")
            if not isk2:
                g.e(f"v_lshlrev_b32 v{60+4*nb+2*p}, 16, v{230+2*nb+p}")
                g.e(f"v_and_b32 v{61+4*nb+2*p}, 0xffff0000, v{230+2*nb+p}")
    for nb in range(5):
        for j in range(4):
            a = 100 + 4 * nb + j
            if not isk2:
                g.e(f"v_add_f32 v{a}, v{a}, v{60+4*nb+j}")
            g.e(f"v_add_f32 v{a}, v{a}, v{40+4*nb+j}")
    for nb in range(5):
        g.e(f"v_cvt_pk_bf16_f32 v{80+2*nb}, v{100+4*nb}, v{101+4*nb}")
        g.e(f"v_cvt_pk_bf16_f32 v{81+2*nb}, v{102+4*nb}, v{103+4*nb}")
    for nb in range(5):
        g.e(f"buffer_store_dwordx2 v[{80+2*nb}:{81+2*nb}], v30, s[44:47], 0 offen offset:{32*nb}")
    for nb in range(5):
        for p in range(2):
            g.e(f"v_lshlrev_b32 v{100+4*nb+2*p}, 16, v{80+2*nb+p}")
            g.e(f"v_and_b32 v{101+4*nb+2*p}, 0xffff0000, v{80+2*nb+p}")
    g.e("v_add_f32 v4, v100, v101")
    for i in range(2, 20):
        g.e(f"v_add_f32 v4, v4, v{100+i}")
    g.e("ds_swizzle_b32 v5, v4 offset:0x401F")
    g.e("s_waitcnt lgkmcnt(0)")
    g.e("v_add_f32 v4, v4, v5")
    g.e("v_mov_b32 v5, v4")
    g.e("s_nop 1")
    g.e("v_permlane32_swap_b32 v5, v5") if False else None
    g.e("v_xor_b32 v6, 32, v1")
    g.e("v_lshlrev_b32 v6, 2, v6")
    g.e("ds_bpermute_b32 v5, v6, v4")
    g.e("s_waitcnt lgkmcnt(0)")
    g.e("v_add_f32 v4, v4, v5")
    g.e(f"v_mul_f32 v7, {f2u(1.0/80.0)}, v4")
    g.e("v_mov_b32 v8, 0")
    for i in range(20):
        g.e(f"v_sub_f32 v9, v{100+i}, v7")
        g.e("v_fma_f32 v8, v9, v9, v8")
    g.e("ds_swizzle_b32 v5, v8 offset:0x401F")
    g.e("s_waitcnt lgkmcnt(0)")
    g.e("v_add_f32 v8, v8, v5")
    g.e("ds_bpermute_b32 v5, v6, v8")
    g.e("s_waitcnt lgkmcnt(0)")
    g.e("v_add_f32 v5, v8, v5")
    g.e("s_lshl_b32 s54, s52, 6")
    g.e("s_lshl_b32 s58, s26, 4")
    g.e("s_add_u32 s54, s54, s58")
    g.e("v_add_u32 v10, s54, v2")
    g.e("v_lshlrev_b32 v10, 6, v10")
    g.e("s_lshl_b32 s55, s53, 3")
    g.e("v_cmp_eq_u32 vcc, 0, v3")
    g.e("s_and_saveexec_b64 s[56:57], vcc")
    g.e("buffer_store_dwordx2 v[4:5], v10, s[48:51], s55 offen")
    g.e("s_mov_b64 exec, s[56:57]")
    g.lab(f"K{which}_end")
    g.e("s_endpgm")


def main():
    g = Gen()
    hdr = open(OUT + ".ref").read().split("; Override launch geometry")[0]
    g.raw(hdr.rstrip("\n"))
    launches = [
        ("k0_prep_kernel", 201, 24576),
        ("k1_l0_kernel", 192, 114688),
        ("k2_l0_kernel", 256, 143360),
        ("k3_l0_kernel", 216, 126976),
        ("k4_l0_kernel", 256, 147456),
        ("k1_l1_kernel", 192, 114688),
        ("k2_l1_kernel", 256, 143360),
        ("k3_l1_kernel", 216, 126976),
        ("k4_l1_kernel", 256, 147456),
    ]
    for (k, gx, lds) in launches:
        g.raw(f"; @launch kernel={k} grid=({gx},1,1) block=(256,1,1) lds={lds}")
    g.raw('.amdgcn_target "amdgcn-amd-amdhsa--gfx950"')
    g.raw(".text")
    gen_k0(g)
    gen_k1(g)
    gen_k3(g)
    gen_k24(g, 2)
    gen_k24(g, 4)
    g.raw('.section .rodata,"a"')
    for (name, vg, sg) in KERNELS:
        g.raw(".p2align 6")
        g.raw(f".amdhsa_kernel {name}")
        g.raw(f"  .amdhsa_next_free_vgpr {vg}")
        g.raw(f"  .amdhsa_next_free_sgpr {sg}")
        g.raw(f"  .amdhsa_accum_offset {vg}")
        g.raw("  .amdhsa_group_segment_fixed_size 0")
        g.raw("  .amdhsa_kernarg_size 88")
        g.raw("  .amdhsa_user_sgpr_count 2")
        g.raw("  .amdhsa_user_sgpr_kernarg_segment_ptr 1")
        g.raw("  .amdhsa_system_sgpr_workgroup_id_x 1")
        g.raw(".end_amdhsa_kernel")
    open(OUT, "w").write("\n".join(g.L) + "\n")
    print("wrote", OUT, len(g.L), "lines")


if __name__ == "__main__":
    main()
```

```python
import sys

OUT = "interleave_layers__linear_attn_block__dense_activation_gelu__prompt.s"

WS_X1 = 0x0
WS_X2 = 0x300000
WS_X3 = 0x600000
WS_PQ = 0x900000
WS_H = 0xC00000
WS_KV = 0x1400000
WS_KV_L = 0x20000
WS_CSQ = 0x1440000
WS_CS1 = 0x1444000
WS_ST = 0x1480000
WS_ST_V = 0x20000

XB = 2048 * 640 * 2
HB = 2048 * 1728 * 2

LOG2E = 1.4426950408889634


def f2u(x):
    import struct
    return struct.unpack("<I", struct.pack("<f", x))[0]


class Gen:
    def __init__(self):
        self.L = []

    def e(self, s):
        self.L.append("    " + s)

    def c(self, s):
        self.L.append("    ; " + s)

    def lab(self, s):
        self.L.append(s + ":")

    def raw(self, s):
        self.L.append(s)


def srd_from(g, s, lo, hi, nbytes):
    g.e(f"s_mov_b32 s{s}, s{lo}")
    g.e(f"s_mov_b32 s{s+1}, s{hi}")
    g.e(f"s_mov_b32 s{s+2}, {nbytes}")
    g.e(f"s_mov_b32 s{s+3}, 0x00020000")


def srd_ws(g, s, off, nbytes, tmp=98):
    g.e(f"s_add_u32 s{s}, s24, {off}")
    g.e(f"s_addc_u32 s{s+1}, s25, 0")
    g.e(f"s_mov_b32 s{s+2}, {nbytes}")
    g.e(f"s_mov_b32 s{s+3}, 0x00020000")


def load_kernargs(g):
    if DBG_TS:
        g.e("s_memtime s[86:87]")
    g.e("s_load_dwordx16 s[4:19], s[0:1], 0")
    g.e("s_load_dwordx4 s[20:23], s[0:1], 64")
    g.e("s_load_dwordx2 s[24:25], s[0:1], 80")


KERNELS = []
DBG_TS = False
WS_TS = 0x1800000


def ts(g, idx):
    if not DBG_TS:
        return
    if idx == 7:
        g.e("s_mov_b64 s[92:93], s[86:87]")
    else:
        g.e("s_memtime s[92:93]")
    g.e(f"s_add_u32 s88, s24, {WS_TS}")
    g.e("s_addc_u32 s89, s25, 0")
    g.e("s_mov_b32 s90, 0x100000")
    g.e("s_mov_b32 s91, 0x00020000")
    g.e("s_waitcnt lgkmcnt(0)")
    g.e("v_mov_b32 v250, s92")
    g.e("s_lshl_b32 s94, s2, 7")
    g.e("s_lshl_b32 s95, s26, 5")
    g.e("s_add_u32 s94, s94, s95")
    g.e("v_mov_b32 v251, s94")
    g.e("v_cmp_eq_u32 vcc, 0, v1")
    g.e("s_and_saveexec_b64 s[96:97], vcc")
    g.e(f"buffer_store_dword v250, v251, s[88:91], 0 offen offset:{4*idx}")
    g.e("s_mov_b64 exec, s[96:97]")


def kernel_begin(g, name):
    g.raw(f".globl {name}")
    g.raw(".p2align 8")
    g.raw(f".type {name},@function")
    g.lab(name)


def gen_k0(g):
    kernel_begin(g, "k0_prep_kernel")
    load_kernargs(g)
    g.e("s_cmp_ge_u32 s2, 201")
    g.e("s_cbranch_scc1 K0_end")
    g.e("s_waitcnt lgkmcnt(0)")
    g.e("s_cmp_ge_u32 s2, 185")
    g.e("s_cbranch_scc1 K0_zero")
    g.e("s_cmp_ge_u32 s2, 128")
    g.e("s_cbranch_scc1 K0_colsum")
    srd_from(g, 28, 4, 5, XB)
    srd_ws(g, 32, WS_ST, WS_ST_V)
    g.e("v_lshrrev_b32 v1, 4, v0")
    g.e("s_lshl_b32 s3, s2, 4")
    g.e("v_add_u32 v1, s3, v1")
    g.e("v_and_b32 v2, 15, v0")
    g.e("v_mul_u32_u24 v3, 1280, v1")
    g.e("v_mul_u32_u24 v4, 80, v2")
    g.e("v_add_u32 v3, v3, v4")
    for i in range(5):
        g.e(f"buffer_load_dwordx4 v[{8+4*i}:{11+4*i}], v3, s[28:31], 0 offen offset:{16*i}")
    g.e("s_waitcnt vmcnt(0)")
    for i in range(20):
        g.e(f"v_lshlrev_b32 v{32+2*i}, 16, v{8+i}")
        g.e(f"v_and_b32 v{33+2*i}, 0xffff0000, v{8+i}")
    g.e("v_add_f32 v5, v32, v33")
    for i in range(2, 40):
        g.e(f"v_add_f32 v5, v5, v{32+i}")
    g.e("s_nop 1")
    g.e("v_add_f32_dpp v6, v5, v5 quad_perm:[1,0,3,2] row_mask:0xf bank_mask:0xf")
    g.e(f"v_mul_f32 v7, {f2u(1.0/80.0)}, v6")
    g.e("v_mov_b32 v8, 0")
    for i in range(40):
        g.e(f"v_sub_f32 v9, v{32+i}, v7")
        g.e(f"v_fma_f32 v8, v9, v9, v8")
    g.e("s_nop 1")
    g.e("v_add_f32_dpp v7, v8, v8 quad_perm:[1,0,3,2] row_mask:0xf bank_mask:0xf")
    g.e("v_lshlrev_b32 v10, 6, v1")
    g.e("v_lshrrev_b32 v11, 1, v2")
    g.e("v_lshlrev_b32 v11, 3, v11")
    g.e("v_add_u32 v10, v10, v11")
    g.e("v_and_b32 v11, 1, v2")
    g.e("v_cmp_eq_u32 vcc, 0, v11")
    g.e("s_and_saveexec_b64 s[40:41], vcc")
    g.e("buffer_store_dwordx2 v[6:7], v10, s[32:35], 0 offen")
    g.e("s_mov_b64 exec, s[40:41]")
    g.e("s_endpgm")
    g.lab("K0_colsum")
    g.e("s_sub_u32 s3, s2, 128")
    g.e("s_cmp_ge_u32 s3, 30")
    g.e("s_cbranch_scc1 K0_cs_w1")
    srd_from(g, 28, 6, 7, 640 * 1920 * 2)
    srd_ws(g, 32, WS_CSQ, 1920 * 4)
    g.e("s_movk_i32 s42, 3840")
    g.e("s_branch K0_cs_go")
    g.lab("K0_cs_w1")
    g.e("s_sub_u32 s3, s3, 30")
    srd_from(g, 28, 12, 13, 640 * 1728 * 2)
    srd_ws(g, 32, WS_CS1, 1728 * 4)
    g.e("s_movk_i32 s42, 3456")
    g.lab("K0_cs_go")
    g.e("v_and_b32 v1, 7, v0")
    g.e("v_lshrrev_b32 v2, 3, v0")
    g.e("v_mul_lo_u32 v3, s42, v2")
    g.e("v_lshlrev_b32 v4, 4, v1")
    g.e("v_add_u32 v3, v3, v4")
    g.e("s_lshl_b32 s43, s3, 7")
    g.e("s_lshl_b32 s44, s42, 5")
    for i in range(20):
        g.e(f"buffer_load_dwordx4 v[{8+4*i}:{11+4*i}], v3, s[28:31], s43 offen")
        if i < 19:
            g.e("s_add_u32 s43, s43, s44")
    g.e("s_waitcnt vmcnt(0)")
    for j in range(8):
        g.e(f"v_mov_b32 v{100+j}, 0")
    for i in range(20):
        for d in range(4):
            g.e(f"v_lshlrev_b32 v96, 16, v{8+4*i+d}")
            g.e(f"v_and_b32 v97, 0xffff0000, v{8+4*i+d}")
            g.e(f"v_add_f32 v{100+2*d}, v{100+2*d}, v96")
            g.e(f"v_add_f32 v{101+2*d}, v{101+2*d}, v97")
    g.e("v_lshlrev_b32 v4, 8, v2")
    g.e("v_lshlrev_b32 v5, 5, v1")
    g.e("v_add_u32 v4, v4, v5")
    g.e("ds_write_b128 v4, v[100:103]")
    g.e("ds_write_b128 v4, v[104:107] offset:16")
    g.e("s_waitcnt lgkmcnt(0)")
    g.e("s_barrier")
    g.e("v_cmp_gt_u32 vcc, 64, v0")
    g.e("s_and_saveexec_b64 s[40:41], vcc")
    g.e("s_cbranch_execz K0_cs_done")
    g.e("v_lshlrev_b32 v4, 2, v0")
    for i in range(32):
        g.e(f"ds_read_b32 v{8+i}, v4 offset:{256*i}")
    g.e("s_waitcnt lgkmcnt(0)")
    for i in range(1, 32):
        g.e(f"v_add_f32 v8, v8, v{8+i}")
    g.e("s_lshl_b32 s43, s3, 8")
    g.e("buffer_store_dword v8, v4, s[32:35], s43 offen")
    g.lab("K0_cs_done")
    g.e("s_mov_b64 exec, s[40:41]")
    g.e("s_endpgm")
    g.lab("K0_zero")
    srd_ws(g, 32, WS_KV, 2 * WS_KV_L)
    g.e("s_sub_u32 s3, s2, 185")
    g.e("s_lshl_b32 s3, s3, 14")
    g.e("v_lshlrev_b32 v1, 4, v0")
    for j in range(4):
        g.e(f"v_mov_b32 v{4+j}, 0")
    for j in range(4):
        g.e(f"buffer_store_dwordx4 v[4:7], v1, s[32:35], s3 offen offset:{4096*j if j < 1 else 0}" if False else
            f"buffer_store_dwordx4 v[4:7], v1, s[32:35], s3 offen")
        if j < 3:
            g.e("s_add_u32 s3, s3, 4096")
    g.lab("K0_end")
    g.e("s_endpgm")
    KERNELS.append(("k0_prep_kernel", 128, 64))


def div_magic(n, qmax):
    for S in range(8, 24):
        M = (1 << S) // n + 1
        if M >= (1 << 24):
            continue
        if all(((q * M) >> S) == q // n for q in range(qmax)):
            return M, S
    raise RuntimeError("no magic")


def emit_divmod(g, vq, vdiv, vmod, n, qmax, vt):
    M, S = div_magic(n, qmax)
    g.e(f"v_mov_b32 v{vt}, {M}")
    g.e(f"v_mul_u32_u24 v{vdiv}, v{vt}, v{vq}")
    g.e(f"v_lshrrev_b32 v{vdiv}, {S}, v{vdiv}")
    g.e(f"v_mul_u32_u24 v{vt}, {n}, v{vdiv}")
    g.e(f"v_sub_u32 v{vmod}, v{vq}, v{vt}")


class Loop:
    def __init__(self, g, mf, BS, BN, BK, nstep, nstage, xb, xsz, wb, wsz,
                 sblks, nblks, transposed, acc0, fr0, fr1,
                 vx_dma, vw_dma, nx_dma, nw_dma, vx_rd, vw_rd,
                 s_xoff, s_woff, s_m0x, s_m0w, xstep_bytes, wstep_bytes,
                 x_resident=False, last_sub=None, w_imm_nb=None, sx_srd=28, sw_srd=32,
                 extra_at_step0=None, vx_hi=None, x_hi_delta=0, vw_hi=None, w_hi_delta=0):
        self.__dict__.update(locals())

    def dma_pieces(self, st):
        slot = st % self.nstage
        out = []
        if not self.x_resident:
            for j in range(self.nx_dma):
                grp = [f"s_add_u32 m0, s{self.s_m0x}, {self.xb + slot*self.xsz + 1024*j}",
                       "s_nop 0",
                       f"buffer_load_dwordx4 v{self.vx_dma+j}, s[{self.sx_srd}:{self.sx_srd+3}], s{self.s_xoff} offen lds"]
                if j == self.nx_dma - 1:
                    grp.append(f"s_add_u32 s{self.s_xoff}, s{self.s_xoff}, {self.xstep_bytes}")
                out.append(grp)
        for j in range(self.nw_dma):
            grp = [f"s_add_u32 m0, s{self.s_m0w}, {self.wb + slot*self.wsz + 1024*j}",
                   "s_nop 0",
                   f"buffer_load_dwordx4 v{self.vw_dma+j}, s[{self.sw_srd}:{self.sw_srd+3}], s{self.s_woff} offen lds"]
            if j == self.nw_dma - 1:
                grp.append(f"s_add_u32 s{self.s_woff}, s{self.s_woff}, {self.wstep_bytes}")
            out.append(grp)
        return out

    def read_list(self, st, kk, fr):
        slot = st % self.nstage
        out = []
        ksub = 16 if self.mf == 32 else 32
        for i, sb in enumerate(self.sblks):
            off = self.xb + (st if self.x_resident else slot) * self.xsz
            va = self.vx_rd + (i * (self.BK // ksub) + kk)
            if off >= 65536:
                va = self.vx_hi + (i * (self.BK // ksub) + kk)
                off -= self.x_hi_delta
            assert off < 65536
            out.append(f"ds_read_b128 v[{fr+4*i}:{fr+4*i+3}], v{va} offset:{off}")
        base = fr + 4 * len(self.sblks)
        pitch = self.BN * 2
        for i, nb in enumerate(self.nblks):
            va, imm = self.w_imm_nb(i, nb)
            off = slot * self.wsz + kk * ksub * pitch + imm
            hi2 = (4 if self.mf == 32 else 8) * pitch
            if off + hi2 >= 65536:
                va = self.vw_hi
                off -= self.w_hi_delta
            assert off + hi2 < 65536, (off, hi2)
            out.append(f"ds_read_b64_tr_b16 v[{base+4*i}:{base+4*i+1}], v{va} offset:{off}")
            out.append(f"ds_read_b64_tr_b16 v[{base+4*i+2}:{base+4*i+3}], v{va} offset:{off+hi2}")
        return out

    def mfma_list(self, fr):
        nacc = 16 if self.mf == 32 else 4
        op = "v_mfma_f32_32x32x16_bf16" if self.mf == 32 else "v_mfma_f32_16x16x32_bf16"
        base = fr + 4 * len(self.sblks)
        out = []
        for i, sb in enumerate(self.sblks):
            for j, nb in enumerate(self.nblks):
                a = self.acc0 + (i * len(self.nblks) + j) * nacc
                xf = f"v[{fr+4*i}:{fr+4*i+3}]"
                wf = f"v[{base+4*j}:{base+4*j+3}]"
                acc = f"v[{a}:{a+nacc-1}]"
                if self.transposed:
                    out.append(f"{op} {acc}, {wf}, {xf}, {acc}")
                else:
                    out.append(f"{op} {acc}, {xf}, {wf}, {acc}")
        return out

    def run(self):
        g = self.g
        ksub = 16 if self.mf == 32 else 32
        nsub = self.BK // ksub
        D = self.nw_dma + (0 if self.x_resident else self.nx_dma)
        NS = self.nstage
        nacc = 16 if self.mf == 32 else 4
        for r in range(len(self.sblks) * len(self.nblks) * nacc):
            g.e(f"v_mov_b32 v{self.acc0+r}, 0")
        for st in range(min(NS - 1, self.nstep)):
            for grp in self.dma_pieces(st):
                for l in grp:
                    g.e(l)
        subs = []
        for k in range(self.nstep):
            ns = nsub if (self.last_sub is None or k < self.nstep - 1) else self.last_sub
            for kk in range(ns):
                subs.append((k, kk))
        sets = [self.fr0, self.fr1]
        pending_dma = []

        def stage_entry(k):
            issued_after = min(k + NS - 2, self.nstep - 1) - k
            g.e(f"s_waitcnt vmcnt({D*issued_after + len(pending_dma)})")
            g.e("s_barrier")
            if k == 0 and self.extra_at_step0:
                self.extra_at_step0()
            if k + NS - 1 < self.nstep:
                pending_dma.extend(self.dma_pieces(k + NS - 1))

        stage_entry(0)
        for l in self.read_list(0, 0, sets[0]):
            g.e(l)
        for t, (k, kk) in enumerate(subs):
            g.e("s_waitcnt lgkmcnt(0)")
            fillers = []
            if t + 1 < len(subs):
                k2, kk2 = subs[t + 1]
                if k2 != k:
                    for grp in pending_dma:
                        for l in grp:
                            g.e(l)
                    pending_dma.clear()
                    stage_entry(k2)
                fillers = [[l] for l in self.read_list(k2, kk2, sets[(t + 1) & 1])]
            rem = 1
            for tt in range(t + 1, len(subs)):
                if subs[tt][0] == k:
                    rem += 1
            take = -(-len(pending_dma) // rem) if pending_dma else 0
            dm = pending_dma[:take]
            del pending_dma[:take]
            mf = self.mfma_list(sets[t & 1])
            nm = len(mf)
            slots = [[] for _ in range(nm)]
            for i, f in enumerate(fillers):
                slots[min(nm - 1, i * max(1, nm - 1) // max(1, len(fillers)))].append(f)
            for i, f in enumerate(dm):
                slots[min(nm - 1, 1 + i * (nm - 1) // max(1, len(dm)))].append(f)
            for i in range(nm):
                g.e(mf[i])
                for f in slots[i]:
                    for l in f:
                        g.e(l)
        g.e("s_nop 7")
        g.e("s_nop 7")


def wave_id_sgpr(g, sdst):
    g.e("v_lshrrev_b32 v1, 6, v0")
    g.e("s_nop 0")
    g.e(f"v_readfirstlane_b32 s{sdst}, v1")


def emit_row_stats_loads(g, nrows_pow2_log, srd, vrow, vdst):
    pass


def stats_finalize(g, vst, vout_rs, vout_nm, vt):
    g.e(f"v_add_f32 v{vt}, v{vst}, v{vst+2}")
    for t in range(2, 8):
        g.e(f"v_add_f32 v{vt}, v{vt}, v{vst+2*t}")
    g.e(f"v_mul_f32 v{vt}, {f2u(1.0/640.0)}, v{vt}")
    g.e(f"v_add_f32 v{vt+1}, v{vst+1}, v{vst+3}")
    for t in range(2, 8):
        g.e(f"v_add_f32 v{vt+1}, v{vt+1}, v{vst+2*t+1}")
    for t in range(8):
        g.e(f"v_fma_f32 v{vt+2}, v{vst+2*t}, {hex(f2u(1.0/80.0)) if False else 's99'}, -v{vt}")
        g.e(f"v_mul_f32 v{vt+3}, v{vt+2}, v{vt+2}")
        g.e(f"v_fma_f32 v{vt+1}, v{vt+3}, s100, v{vt+1}")
    g.e(f"v_mul_f32 v{vt+1}, {f2u(1.0/640.0)}, v{vt+1}")
    g.e(f"v_add_f32 v{vt+1}, {f2u(1e-5)}, v{vt+1}")
    g.e(f"v_rsq_f32 v{vout_rs}, v{vt+1}")
    g.e("s_nop 0")
    g.e(f"v_mul_f32 v{vout_nm}, v{vout_rs}, v{vt}")
    g.e(f"v_sub_f32 v{vout_nm}, 0, v{vout_nm}")


def set_stats_consts(g):
    g.e(f"s_mov_b32 s99, {hex(f2u(1.0/80.0))}")
    g.e(f"s_mov_b32 s100, {hex(f2u(80.0))}")


def gen_k1(g):
    for L in range(2):
        kernel_begin(g, f"k1_l{L}_kernel")
        g.e(f"s_mov_b32 s101, {L}")
        g.e("s_branch K1_body")
        KERNELS.append((f"k1_l{L}_kernel", 256, 102))
    g.raw(".p2align 8")
    g.lab("K1_body")
    load_kernargs(g)
    g.e("s_cmp_ge_u32 s2, 192")
    g.e("s_cbranch_scc1 K1_end")
    set_stats_consts(g)
    wave_id_sgpr(g, 26)
    g.e("s_waitcnt lgkmcnt(0)")
    g.e(f"s_add_u32 s40, s24, {WS_X2}")
    g.e("s_addc_u32 s41, s25, 0")
    g.e("s_cmp_eq_u32 s101, 0")
    g.e("s_cselect_b32 s40, s4, s40")
    g.e("s_cselect_b32 s41, s5, s41")
    srd_from(g, 28, 40, 41, XB)
    srd_from(g, 32, 6, 7, 640 * 1920 * 2)
    g.e(f"s_mul_i32 s42, s101, {2*WS_ST_V}")
    g.e(f"s_add_u32 s42, s42, {WS_ST}")
    g.e("s_add_u32 s36, s24, s42")
    g.e("s_addc_u32 s37, s25, 0")
    g.e(f"s_mov_b32 s38, {WS_ST_V}")
    g.e("s_mov_b32 s39, 0x00020000")
    srd_ws(g, 44, WS_CSQ, 1920 * 4)
    srd_ws(g, 48, WS_PQ, XB)
    g.e("s_and_b32 s52, s2, 15")
    g.e("s_lshr_b32 s53, s2, 4")
    g.e("s_lshl_b32 s54, s52, 7")
    g.e("v_add_u32 v1, s54, v0")
    g.e("v_lshlrev_b32 v1, 6, v1")
    g.e("v_cmp_gt_u32 vcc, 128, v0")
    g.e("s_and_saveexec_b64 s[56:57], vcc")
    for i in range(4):
        g.e(f"buffer_load_dwordx4 v[{180+4*i}:{183+4*i}], v1, s[36:39], 0 offen offset:{16*i}")
    g.e("s_mov_b64 exec, s[56:57]")
    g.e("s_cmp_ge_u32 s53, 8")
    g.e("s_cbranch_scc1 K1_csq")
    g.e("s_mul_i32 s55, s53, 320")
    g.e("s_add_u32 s55, s55, 2560")
    g.e("v_lshlrev_b32 v2, 4, v0")
    g.e("v_cmp_le_u32 vcc, 20, v0")
    g.e("s_nop 1")
    g.e("v_mov_b32 v3, 2240")
    g.e("v_cndmask_b32 v3, 0, v3, vcc")
    g.e("v_add_u32 v2, v2, v3")
    g.e("s_branch K1_csgo")
    g.lab("K1_csq")
    g.e("s_sub_u32 s55, s53, 8")
    g.e("s_mul_i32 s55, s55, 640")
    g.e("v_lshlrev_b32 v2, 4, v0")
    g.lab("K1_csgo")
    g.e("v_cmp_gt_u32 vcc, 40, v0")
    g.e("s_and_saveexec_b64 s[56:57], vcc")
    g.e("buffer_load_dwordx4 v[196:199], v2, s[44:47], s55 offen")
    g.e("s_mov_b64 exec, s[56:57]")

    g.e("v_and_b32 v1, 63, v0")
    g.e("v_lshrrev_b32 v2, 3, v1")
    g.e("v_and_b32 v3, 7, v1")
    g.e("s_lshl_b32 s58, s26, 5")
    for jj in range(4):
        g.e(f"v_add_u32 v4, s58, v2")
        g.e(f"v_add_u32 v4, {8*jj}, v4")
        g.e("v_lshrrev_b32 v5, 1, v4")
        g.e("v_and_b32 v5, 7, v5")
        g.e("v_xor_b32 v5, v5, v3")
        g.e("v_lshlrev_b32 v5, 4, v5")
        g.e("v_mul_u32_u24 v4, 1280, v4")
        g.e(f"v_add_u32 v{10+jj}, v4, v5")
    g.e("s_mul_i32 s58, s26, 320")
    g.e("s_cmp_ge_u32 s53, 8")
    g.e("s_cselect_b32 s59, 0, 1120")
    for jj in range(5):
        g.e(f"v_add_u32 v4, s58, v1")
        g.e(f"v_add_u32 v4, {64*jj}, v4")
        emit_divmod(g, 4, 5, 6, 20, 1280, 7)
        g.e("v_mul_u32_u24 v5, 3840, v5")
        g.e("v_lshlrev_b32 v7, 4, v6")
        g.e("v_add_u32 v5, v5, v7")
        g.e("v_cmp_le_u32 vcc, 10, v6")
        g.e("v_mov_b32 v7, s59")
        g.e("s_nop 0")
        g.e("v_cndmask_b32 v7, 0, v7, vcc")
        g.e(f"v_add_u32 v{14+jj}, v5, v7")
    g.e("s_mul_i32 s60, s52, 163840")
    g.e("s_mul_i32 s61, s53, 160")
    g.e("s_add_u32 s61, s61, 1280")
    g.e("s_sub_u32 s62, s53, 8")
    g.e("s_mul_i32 s62, s62, 320")
    g.e("s_cmp_ge_u32 s53, 8")
    g.e("s_cselect_b32 s61, s62, s61")
    g.e("s_lshl_b32 s62, s26, 12")
    g.e("s_mul_i32 s63, s26, 5120")
    g.e("v_and_b32 v2, 31, v1")
    g.e("s_lshl_b32 s58, s26, 5")
    g.e("v_add_u32 v2, s58, v2")
    g.e("v_lshrrev_b32 v3, 5, v1")
    g.e("v_lshrrev_b32 v4, 1, v2")
    g.e("v_and_b32 v4, 7, v4")
    for kk in range(4):
        g.e(f"v_add_u32 v5, {2*kk}, v3")
        g.e("v_xor_b32 v5, v5, v4")
        g.e("v_lshlrev_b32 v5, 4, v5")
        g.e("v_lshlrev_b32 v6, 7, v2")
        g.e(f"v_add_u32 v{20+kk}, v5, v6")
    g.e("v_and_b32 v4, 15, v1")
    g.e("v_lshrrev_b32 v5, 2, v4")
    g.e("v_and_b32 v6, 3, v4")
    g.e("v_lshlrev_b32 v7, 3, v3")
    g.e("v_add_u32 v5, v5, v7")
    g.e("v_mul_u32_u24 v5, 320, v5")
    g.e("v_lshrrev_b32 v7, 4, v1")
    g.e("v_and_b32 v7, 1, v7")
    g.e("v_lshlrev_b32 v7, 5, v7")
    g.e("v_add_u32 v5, v5, v7")
    g.e("v_lshlrev_b32 v6, 3, v6")
    g.e("v_add_u32 v5, v5, v6")
    g.e("v_add_u32 v24, 53248, v5")

    ST_L = 0
    CS_L = 1024
    KVR = 4096

    def extra0():
        g.e("v_cmp_gt_u32 vcc, 128, v0")
        g.e("s_and_saveexec_b64 s[56:57], vcc")
        stats_finalize(g, 180, 200, 201, 202)
        g.e("v_lshlrev_b32 v202, 3, v0")
        g.e(f"ds_write_b64 v202, v[200:201] offset:{ST_L}")
        g.e("s_mov_b64 exec, s[56:57]")
        g.e("v_cmp_gt_u32 vcc, 40, v0")
        g.e("s_and_saveexec_b64 s[56:57], vcc")
        g.e("v_lshlrev_b32 v202, 4, v0")
        g.e(f"ds_write_b128 v202, v[196:199] offset:{CS_L}")
        g.e("s_mov_b64 exec, s[56:57]")

    common = dict(mf=32, BS=128, BN=160, BK=64, nstep=10, nstage=3, xb=4096, xsz=16384, wb=53248, wsz=20480,
                  sblks=[0], nblks=[0, 1, 2, 3, 4], acc0=100, fr0=40, fr1=64,
                  vx_dma=10, vw_dma=14, nx_dma=4, nw_dma=5, vx_rd=20, vw_rd=24,
                  s_xoff=60, s_woff=61, s_m0x=62, s_m0w=63, xstep_bytes=128, wstep_bytes=64 * 3840,
                  w_imm_nb=lambda i, nb: (24, 64 * nb), extra_at_step0=extra0)
    ts(g, 0)
    ts(g, 7)
    g.e("s_cmp_ge_u32 s53, 8")
    g.e("s_cbranch_scc1 K1_qpath")

    Loop(g, transposed=False, **common).run()
    g.e("s_waitcnt vmcnt(0) lgkmcnt(0)")
    ts(g, 1)
    g.e("s_barrier")
    g.e("v_and_b32 v1, 63, v0")
    g.e("v_and_b32 v2, 31, v1")
    g.e("v_lshrrev_b32 v3, 5, v1")
    g.e("s_lshl_b32 s58, s26, 5")
    g.e("v_lshlrev_b32 v4, 2, v3")
    g.e("v_add_u32 v4, s58, v4")
    g.e("v_lshlrev_b32 v4, 3, v4")
    for gg in range(4):
        g.e(f"ds_read_b128 v[{200+8*gg}:{203+8*gg}], v4 offset:{ST_L+64*gg}")
        g.e(f"ds_read_b128 v[{204+8*gg}:{207+8*gg}], v4 offset:{ST_L+64*gg+16}")
    g.e("v_lshlrev_b32 v5, 2, v2")
    for nb in range(5):
        g.e(f"ds_read_b32 v{232+nb}, v5 offset:{CS_L+128*nb}")
    g.e("s_waitcnt lgkmcnt(0)")
    g.e("s_barrier")
    g.e(f"s_mov_b32 s64, {hex(f2u(LOG2E))}")
    g.e(f"s_mov_b32 s65, {hex(f2u(1e-6))}")
    for nb in range(5):
        for j in range(16):
            a = 100 + 16 * nb + j
            rs = 200 + 2 * j
            g.e(f"v_mul_f32 v4, v{rs+1}, v{232+nb}")
            g.e(f"v_fma_f32 v{a}, v{rs}, v{a}, v4")
            if nb <= 2:
                g.e(f"v_mul_f32 v5, s64, v{a}")
                g.e("v_exp_f32 v5, v5")
                g.e(f"v_add_f32 v6, 1.0, v{a}")
                g.e(f"v_cmp_lt_f32 vcc, 0, v{a}")
                g.e("s_nop 1")
                g.e("v_cndmask_b32 v5, v5, v6, vcc")
                if nb < 2:
                    g.e(f"v_add_f32 v{a}, s65, v5")
                else:
                    g.e("v_add_f32 v5, s65, v5")
                    g.e("v_cmp_gt_u32 vcc, 16, v2")
                    g.e("s_nop 1")
                    g.e(f"v_cndmask_b32 v{a}, v{a}, v5, vcc")
    ts(g, 4)
    for nb in range(3):
        g.e(f"v_add_f32 v{240+nb}, v{100+16*nb}, v{101+16*nb}")
        for j in range(2, 16):
            g.e(f"v_add_f32 v{240+nb}, v{240+nb}, v{100+16*nb+j}")
    for nb in range(5):
        for p in range(8):
            g.e(f"v_cvt_pk_bf16_f32 v{40+8*nb+p}, v{100+16*nb+2*p}, v{101+16*nb+2*p}")
    g.e("s_nop 1")
    pairs = [(0, 2), (0, 3), (1, 3), (1, 4), (2, 4)]
    for pi in range(5):
        for r in range(16):
            g.e(f"v_mov_b32 v{100+16*pi+r}, 0")
    g.e("s_nop 1")
    for pi, (kb, vb) in enumerate(pairs):
        a = 100 + 16 * pi
        for gp in range(2):
            g.e(f"v_mfma_f32_32x32x16_bf16 v[{a}:{a+15}], v[{40+8*kb+4*gp}:{43+8*kb+4*gp}], v[{40+8*vb+4*gp}:{43+8*vb+4*gp}], v[{a}:{a+15}]")
    g.e("s_nop 7")
    g.e("s_nop 7")
    ts(g, 5)
    g.e("v_lshlrev_b32 v5, 2, v1")
    g.e("s_mul_i32 s58, s26, 21504")
    g.e("v_add_u32 v5, s58, v5")
    for pi in range(5):
        for r in range(16):
            g.e(f"ds_write_b32 v5, v{100+16*pi+r} offset:{KVR+(16*pi+r)*256}")
    for nb in range(3):
        g.e(f"ds_write_b32 v5, v{240+nb} offset:{KVR+20480+256*nb}")
    g.e("s_waitcnt lgkmcnt(0)")
    g.e("s_barrier")
    ts(g, 6)
    g.e(f"s_mul_i32 s42, s101, {WS_KV_L}")
    g.e(f"s_add_u32 s42, s42, {WS_KV}")
    g.e("s_add_u32 s36, s24, s42")
    g.e("s_addc_u32 s37, s25, 0")
    g.e(f"s_mov_b32 s38, {WS_KV_L}")
    g.e("s_mov_b32 s39, 0x00020000")
    g.e("s_lshl_b32 s42, s53, 14")
    for i in range(7):
        g.e(f"v_add_u32 v4, {256*i}, v0")
        if i == 6:
            g.e("v_cmp_gt_u32 vcc, 1680, v4")
            g.e("s_and_saveexec_b64 s[56:57], vcc")
        emit_divmod(g, 4, 5, 6, 420, 1792, 7)
        emit_divmod(g, 6, 9, 8, 20, 420, 7)
        g.e("v_mul_u32_u24 v10, 20, v5")
        g.e("v_add_u32 v11, v10, v8")
        g.e("v_add_u32 v12, v10, v9")
        g.e("v_add_u32 v12, 80, v12")
        g.e("v_cmp_eq_u32 vcc, 20, v9")
        g.e("v_lshrrev_b32 v14, 5, v11")
        g.e("v_lshrrev_b32 v15, 5, v12")
        g.e("v_add_u32 v14, v14, v15")
        g.e("v_subrev_u32 v14, 2, v14")
        g.e("v_and_b32 v15, 31, v11")
        g.e("v_lshrrev_b32 v16, 3, v15")
        g.e("v_lshlrev_b32 v16, 2, v16")
        g.e("v_and_b32 v17, 3, v15")
        g.e("v_add_u32 v16, v16, v17")
        g.e("v_lshlrev_b32 v14, 4, v14")
        g.e("v_add_u32 v14, v14, v16")
        g.e("v_lshlrev_b32 v14, 8, v14")
        g.e("v_lshrrev_b32 v16, 2, v15")
        g.e("v_and_b32 v16, 1, v16")
        g.e("v_lshlrev_b32 v16, 5, v16")
        g.e("v_and_b32 v17, 31, v12")
        g.e("v_add_u32 v16, v16, v17")
        g.e("v_lshlrev_b32 v16, 2, v16")
        g.e("v_add_u32 v14, v14, v16")
        g.e("v_lshrrev_b32 v16, 5, v11")
        g.e("v_lshlrev_b32 v16, 8, v16")
        g.e("v_lshlrev_b32 v17, 2, v15")
        g.e("v_add_u32 v16, v16, v17")
        g.e("v_add_u32 v16, 20480, v16")
        g.e("v_cndmask_b32 v14, v14, v16, vcc")
        g.e("v_add_u32 v23, 43008, v14")
        g.e("v_add_u32 v24, 43008, v16")
        g.e(f"ds_read_b32 v18, v14 offset:{KVR}")
        g.e(f"ds_read_b32 v25, v14 offset:{KVR+21504}")
        g.e(f"ds_read_b32 v26, v23 offset:{KVR}")
        g.e(f"ds_read_b32 v27, v23 offset:{KVR+21504}")
        g.e(f"ds_read_b32 v19, v16 offset:{KVR+128}")
        g.e(f"ds_read_b32 v28, v16 offset:{KVR+128+21504}")
        g.e(f"ds_read_b32 v29, v24 offset:{KVR+128}")
        g.e(f"ds_read_b32 v30, v24 offset:{KVR+128+21504}")
        g.e("v_lshlrev_b32 v20, 12, v5")
        g.e("v_lshlrev_b32 v21, 7, v9")
        g.e("v_lshlrev_b32 v22, 2, v8")
        g.e("v_add_u32 v21, v21, v22")
        g.e("v_add_u32 v20, v20, v21")
        g.e("s_waitcnt lgkmcnt(0)")
        g.e("v_add_f32 v18, v18, v25")
        g.e("v_add_f32 v26, v26, v27")
        g.e("v_add_f32 v18, v18, v26")
        g.e("v_add_f32 v19, v19, v28")
        g.e("v_add_f32 v29, v29, v30")
        g.e("v_add_f32 v19, v19, v29")
        g.e("v_add_f32 v19, v18, v19")
        g.e("v_cndmask_b32 v18, v18, v19, vcc")
        g.e("buffer_atomic_add_f32 v18, v20, s[36:39], s42 offen")
        if i == 6:
            g.e("s_mov_b64 exec, s[56:57]")
    ts(g, 2)
    g.e("s_waitcnt vmcnt(0)")
    ts(g, 3)
    g.e("s_endpgm")

    g.lab("K1_qpath")
    Loop(g, transposed=True, **common).run()
    g.e("s_waitcnt vmcnt(0) lgkmcnt(0)")
    ts(g, 1)
    g.e("v_and_b32 v1, 63, v0")
    g.e("v_and_b32 v2, 31, v1")
    g.e("v_lshrrev_b32 v3, 5, v1")
    g.e("s_lshl_b32 s58, s26, 5")
    g.e("v_add_u32 v2, s58, v2")
    g.e("v_lshlrev_b32 v4, 3, v2")
    g.e(f"ds_read_b64 v[200:201], v4 offset:{ST_L}")
    g.e("v_lshlrev_b32 v5, 4, v3")
    g.e("s_lshl_b32 s54, s52, 7")
    g.e("v_add_u32 v6, s54, v2")
    g.e("v_mul_u32_u24 v6, 1280, v6")
    g.e("s_sub_u32 s55, s53, 8")
    g.e("s_mul_i32 s55, s55, 320")
    g.e("v_lshlrev_b32 v7, 3, v3")
    g.e("v_add_u32 v6, v6, v7")
    g.e("v_add_u32 v6, s55, v6")
    g.e(f"s_mov_b32 s64, {hex(f2u(LOG2E))}")
    g.e(f"s_mov_b32 s65, {hex(f2u(1e-6))}")
    for nb in range(5):
        for gg in range(4):
            g.e(f"ds_read_b128 v[{204+4*gg}:{207+4*gg}], v5 offset:{CS_L+128*nb+32*gg}")
        g.e("s_waitcnt lgkmcnt(0)")
        for j in range(16):
            a = 100 + 16 * nb + j
            g.e(f"v_mul_f32 v8, v201, v{204+j}")
            g.e(f"v_fma_f32 v{a}, v200, v{a}, v8")
            g.e(f"v_mul_f32 v8, s64, v{a}")
            g.e("v_exp_f32 v8, v8")
            g.e(f"v_add_f32 v9, 1.0, v{a}")
            g.e(f"v_cmp_lt_f32 vcc, 0, v{a}")
            g.e("s_nop 1")
            g.e("v_cndmask_b32 v8, v8, v9, vcc")
            g.e(f"v_add_f32 v{a}, s65, v8")
        for gg in range(4):
            a = 100 + 16 * nb + 4 * gg
            g.e(f"v_cvt_pk_bf16_f32 v{10+2*gg}, v{a}, v{a+1}")
            g.e(f"v_cvt_pk_bf16_f32 v{11+2*gg}, v{a+2}, v{a+3}")
        for gg in range(4):
            g.e(f"buffer_store_dwordx2 v[{10+2*gg}:{11+2*gg}], v6, s[48:51], 0 offen offset:{64*nb+16*gg}")
        g.e("s_nop 1")
    ts(g, 2)
    g.e("s_waitcnt vmcnt(0)")
    ts(g, 3)
    g.lab("K1_end")
    g.e("s_endpgm")


def gen_k3(g):
    for L in range(2):
        kernel_begin(g, f"k3_l{L}_kernel")
        g.e(f"s_mov_b32 s101, {L}")
        g.e("s_branch K3_body")
        KERNELS.append((f"k3_l{L}_kernel", 256, 102))
    g.raw(".p2align 8")
    g.lab("K3_body")
    load_kernargs(g)
    g.e("s_cmp_ge_u32 s2, 216")
    g.e("s_cbranch_scc1 K3_end")
    set_stats_consts(g)
    wave_id_sgpr(g, 26)
    g.e("s_waitcnt lgkmcnt(0)")
    g.e(f"s_mul_i32 s42, s101, {WS_X3-WS_X1}")
    g.e(f"s_add_u32 s40, s24, s42")
    g.e("s_addc_u32 s41, s25, 0")
    srd_from(g, 28, 40, 41, XB)
    srd_from(g, 32, 12, 13, 640 * 1728 * 2)
    g.e(f"s_mul_i32 s42, s101, {2*WS_ST_V}")
    g.e(f"s_add_u32 s42, s42, {WS_ST+WS_ST_V}")
    g.e("s_add_u32 s36, s24, s42")
    g.e("s_addc_u32 s37, s25, 0")
    g.e(f"s_mov_b32 s38, {WS_ST_V}")
    g.e("s_mov_b32 s39, 0x00020000")
    srd_ws(g, 44, WS_CS1, 1728 * 4)
    srd_ws(g, 48, WS_H, HB)
    srd_from(g, 68, 14, 15, 1728 * 2)
    g.e("s_and_b32 s52, s2, 7")
    g.e("s_lshr_b32 s53, s2, 3")
    g.e("s_lshl_b32 s54, s52, 8")
    g.e("v_add_u32 v1, s54, v0")
    g.e("v_lshlrev_b32 v1, 6, v1")
    for i in range(4):
        g.e(f"buffer_load_dwordx4 v[{180+4*i}:{183+4*i}], v1, s[36:39], 0 offen offset:{16*i}")
    g.e("s_lshl_b32 s55, s53, 8")
    g.e("v_lshlrev_b32 v2, 4, v0")
    g.e("v_cmp_gt_u32 vcc, 16, v0")
    g.e("s_and_saveexec_b64 s[56:57], vcc")
    g.e("buffer_load_dwordx4 v[196:199], v2, s[44:47], s55 offen")
    g.e("s_mov_b64 exec, s[56:57]")
    g.e("s_lshl_b32 s55, s53, 7")
    g.e("v_cmp_gt_u32 vcc, 8, v0")
    g.e("s_and_saveexec_b64 s[56:57], vcc")
    g.e("buffer_load_dwordx4 v[224:227], v2, s[68:71], s55 offen")
    g.e("s_mov_b64 exec, s[56:57]")
    g.e("v_and_b32 v1, 63, v0")
    g.e("v_lshrrev_b32 v2, 3, v1")
    g.e("v_and_b32 v3, 7, v1")
    g.e("s_lshl_b32 s58, s26, 6")
    for jj in range(8):
        g.e("v_add_u32 v4, s58, v2")
        g.e(f"v_add_u32 v4, {8*jj}, v4")
        g.e("v_lshrrev_b32 v5, 1, v4")
        g.e("v_and_b32 v5, 7, v5")
        g.e("v_xor_b32 v5, v5, v3")
        g.e("v_lshlrev_b32 v5, 4, v5")
        g.e("v_mul_u32_u24 v4, 1280, v4")
        g.e(f"v_add_u32 v{10+jj}, v4, v5")
    g.e("s_lshl_b32 s58, s26, 4")
    for jj in range(2):
        g.e("v_add_u32 v4, s58, v2")
        g.e(f"v_add_u32 v4, {8*jj}, v4")
        g.e("v_lshrrev_b32 v5, 1, v4")
        g.e("v_and_b32 v5, 1, v5")
        g.e("v_lshlrev_b32 v5, 2, v5")
        g.e("v_xor_b32 v5, v5, v3")
        g.e("v_lshlrev_b32 v5, 4, v5")
        g.e("v_mul_u32_u24 v4, 3456, v4")
        g.e(f"v_add_u32 v{18+jj}, v4, v5")
    g.e("s_mul_i32 s60, s52, 327680")
    g.e("s_lshl_b32 s61, s53, 7")
    g.e("s_lshl_b32 s62, s26, 13")
    g.e("s_lshl_b32 s63, s26, 11")
    g.e("v_lshrrev_b32 v3, 5, v1")
    for sb in range(2):
        g.e("v_and_b32 v2, 31, v1")
        g.e("s_lshl_b32 s58, s26, 6")
        g.e("v_add_u32 v2, s58, v2")
        g.e(f"v_add_u32 v2, {32*sb}, v2")
        g.e("v_lshrrev_b32 v4, 1, v2")
        g.e("v_and_b32 v4, 7, v4")
        for kk in range(4):
            g.e(f"v_add_u32 v5, {2*kk}, v3")
            g.e("v_xor_b32 v5, v5, v4")
            g.e("v_lshlrev_b32 v5, 4, v5")
            g.e("v_lshlrev_b32 v6, 7, v2")
            g.e(f"v_add_u32 v{20+4*sb+kk}, v5, v6")
            g.e(f"v_add_u32 v{32+4*sb+kk}, 0x8000, v{20+4*sb+kk}")
    WB3 = 4096 + 3 * 32768
    g.e("v_and_b32 v4, 15, v1")
    g.e("v_lshrrev_b32 v5, 2, v4")
    g.e("v_and_b32 v6, 3, v4")
    g.e("v_lshlrev_b32 v7, 3, v3")
    g.e("v_add_u32 v7, v5, v7")
    g.e("v_lshlrev_b32 v7, 7, v7")
    g.e("v_lshrrev_b32 v8, 4, v1")
    g.e("v_and_b32 v8, 1, v8")
    g.e("v_lshlrev_b32 v8, 5, v8")
    g.e("v_add_u32 v7, v7, v8")
    g.e("v_lshlrev_b32 v6, 3, v6")
    g.e("v_add_u32 v7, v7, v6")
    g.e(f"v_add_u32 v7, {WB3}, v7")
    g.e("v_lshrrev_b32 v8, 1, v5")
    g.e("v_and_b32 v8, 1, v8")
    g.e("v_lshlrev_b32 v8, 6, v8")
    g.e("v_add_u32 v28, v7, v8")
    g.e("v_xor_b32 v8, 64, v8")
    g.e("v_add_u32 v29, v7, v8")

    ST_L = 0
    CS_L = 2048
    BI_L = 2048 + 256

    def extra0():
        stats_finalize(g, 180, 200, 201, 202)
        g.e("v_lshlrev_b32 v202, 3, v0")
        g.e(f"ds_write_b64 v202, v[200:201] offset:{ST_L}")
        g.e("v_cmp_gt_u32 vcc, 16, v0")
        g.e("s_and_saveexec_b64 s[56:57], vcc")
        g.e("v_lshlrev_b32 v202, 4, v0")
        g.e(f"ds_write_b128 v202, v[196:199] offset:{CS_L}")
        g.e("s_mov_b64 exec, s[56:57]")
        g.e("v_cmp_gt_u32 vcc, 8, v0")
        g.e("s_and_saveexec_b64 s[56:57], vcc")
        for d in range(4):
            g.e(f"v_lshlrev_b32 v{208+2*d}, 16, v{224+d}")
            g.e(f"v_and_b32 v{209+2*d}, 0xffff0000, v{224+d}")
        g.e("v_lshlrev_b32 v202, 5, v0")
        g.e(f"ds_write_b128 v202, v[208:211] offset:{BI_L}")
        g.e(f"ds_write_b128 v202, v[212:215] offset:{BI_L+16}")
        g.e("s_mov_b64 exec, s[56:57]")

    ts(g, 0)
    ts(g, 7)
    Loop(g, mf=32, BS=256, BN=64, BK=64, nstep=10, nstage=3, xb=4096, xsz=32768, wb=WB3, wsz=8192,
         sblks=[0, 1], nblks=[0, 1], transposed=True, acc0=100, fr0=40, fr1=60,
         vx_dma=10, vw_dma=18, nx_dma=8, nw_dma=2, vx_rd=20, vw_rd=28,
         s_xoff=60, s_woff=61, s_m0x=62, s_m0w=63, xstep_bytes=128, wstep_bytes=64 * 3456,
         w_imm_nb=lambda i, nb: (28 + nb, 0), extra_at_step0=extra0, vx_hi=32, x_hi_delta=32768).run()
    g.e("s_waitcnt vmcnt(0) lgkmcnt(0)")
    ts(g, 1)
    g.e("v_and_b32 v1, 63, v0")
    g.e("v_lshrrev_b32 v3, 5, v1")
    g.e("v_lshlrev_b32 v5, 4, v3")
    kk = 2 * 0.7978845608028654 * LOG2E
    g.e(f"s_mov_b32 s64, {hex(f2u(-kk))}")
    g.e(f"s_mov_b32 s65, {hex(f2u(-kk*0.044715))}")
    for nb in range(2):
        for gg in range(4):
            g.e(f"ds_read_b128 v[{204+4*gg}:{207+4*gg}], v5 offset:{CS_L+128*nb+32*gg}")
            g.e(f"ds_read_b128 v[{220+4*gg}:{223+4*gg}], v5 offset:{BI_L+128*nb+32*gg}")
        for sb in range(2):
            g.e("v_and_b32 v2, 31, v1")
            g.e("s_lshl_b32 s58, s26, 6")
            g.e("v_add_u32 v2, s58, v2")
            g.e(f"v_add_u32 v2, {32*sb}, v2")
            g.e("v_lshlrev_b32 v4, 3, v2")
            g.e(f"ds_read_b64 v[200:201], v4 offset:{ST_L}")
            g.e("s_lshl_b32 s54, s52, 8")
            g.e("v_add_u32 v6, s54, v2")
            g.e("v_mul_u32_u24 v6, 3456, v6")
            g.e("s_lshl_b32 s55, s53, 7")
            g.e("v_lshlrev_b32 v7, 3, v3")
            g.e("v_add_u32 v6, v6, v7")
            g.e("v_add_u32 v6, s55, v6")
            g.e("s_waitcnt lgkmcnt(0)")
            for j in range(16):
                a = 100 + (sb * 2 + nb) * 16 + j
                g.e(f"v_fma_f32 v8, v201, v{204+j}, v{220+j}")
                g.e(f"v_fma_f32 v{a}, v200, v{a}, v8")
                g.e(f"v_mul_f32 v8, v{a}, v{a}")
                g.e("v_mov_b32 v9, s64")
                g.e("v_fma_f32 v8, v8, s65, v9")
                g.e(f"v_mul_f32 v8, v8, v{a}")
                g.e("v_exp_f32 v8, v8")
                g.e("s_nop 0")
                g.e("v_add_f32 v8, 1.0, v8")
                g.e("v_rcp_f32 v8, v8")
                g.e("s_nop 0")
                g.e(f"v_mul_f32 v{a}, v{a}, v8")
            for gg in range(4):
                a = 100 + (sb * 2 + nb) * 16 + 4 * gg
                g.e(f"v_cvt_pk_bf16_f32 v{10+2*gg}, v{a}, v{a+1}")
                g.e(f"v_cvt_pk_bf16_f32 v{11+2*gg}, v{a+2}, v{a+3}")
            for gg in range(4):
                g.e(f"buffer_store_dwordx2 v[{10+2*gg}:{11+2*gg}], v6, s[48:51], 0 offen offset:{64*nb+16*gg}")
            g.e("s_nop 1")
    ts(g, 2)
    g.e("s_waitcnt vmcnt(0)")
    ts(g, 3)
    g.lab("K3_end")
    g.e("s_endpgm")


def gen_c_common_addr(g, ld_w):
    pass


def gen_k24(g, which):
    isk2 = which == 2
    name = f"k{which}"
    for L in range(2):
        kernel_begin(g, f"{name}_l{L}_kernel")
        g.e(f"s_mov_b32 s101, {L}")
        g.e(f"s_branch K{which}_body")
        KERNELS.append((f"{name}_l{L}_kernel", 256, 102))
    g.raw(".p2align 8")
    g.lab(f"K{which}_body")
    load_kernargs(g)
    g.e("s_cmp_ge_u32 s2, 256")
    g.e(f"s_cbranch_scc1 K{which}_end")
    wave_id_sgpr(g, 26)
    g.e("s_waitcnt lgkmcnt(0)")
    g.e("s_and_b32 s52, s2, 31")
    g.e("s_lshr_b32 s53, s2, 5")
    if isk2:
        g.e(f"s_add_u32 s40, s24, {WS_X2}")
        g.e("s_addc_u32 s41, s25, 0")
        g.e("s_cmp_eq_u32 s101, 0")
        g.e("s_cselect_b32 s40, s4, s40")
        g.e("s_cselect_b32 s41, s5, s41")
        srd_from(g, 36, 40, 41, XB)
        g.e(f"s_mul_i32 s42, s101, {WS_X3-WS_X1}")
        g.e("s_add_u32 s40, s24, s42")
        g.e("s_addc_u32 s41, s25, 0")
        srd_from(g, 44, 40, 41, XB)
        g.e(f"s_mul_i32 s42, s101, {2*WS_ST_V}")
        g.e(f"s_add_u32 s42, s42, {WS_ST+WS_ST_V}")
        srd_from(g, 32, 8, 9, 640 * 640 * 2)
        srd_ws(g, 28, WS_PQ, XB)
        g.e(f"s_mul_i32 s43, s101, {WS_KV_L}")
        g.e(f"s_add_u32 s43, s43, {WS_KV}")
        g.e("s_add_u32 s68, s24, s43")
        g.e("s_addc_u32 s69, s25, 0")
        g.e(f"s_mov_b32 s70, {WS_KV_L}")
        g.e("s_mov_b32 s71, 0x00020000")
    else:
        g.e(f"s_mul_i32 s42, s101, {WS_X3-WS_X1}")
        g.e("s_add_u32 s40, s24, s42")
        g.e("s_addc_u32 s41, s25, 0")
        srd_from(g, 36, 40, 41, XB)
        g.e(f"s_add_u32 s40, s24, {WS_X2}")
        g.e("s_addc_u32 s41, s25, 0")
        g.e("s_cmp_eq_u32 s101, 0")
        g.e("s_cselect_b32 s40, s40, s20")
        g.e("s_cselect_b32 s41, s41, s21")
        srd_from(g, 44, 40, 41, XB)
        g.e(f"s_mov_b32 s42, {WS_ST+2*WS_ST_V}")
        srd_from(g, 32, 16, 17, 1728 * 640 * 2)
        srd_ws(g, 28, WS_H, HB)
        srd_from(g, 68, 18, 19, 640 * 2)
    g.e("s_add_u32 s48, s24, s42")
    g.e("s_addc_u32 s49, s25, 0")
    g.e(f"s_mov_b32 s50, {WS_ST_V}")
    g.e("s_mov_b32 s51, 0x00020000")

    g.e("v_and_b32 v1, 63, v0")
    g.e("v_and_b32 v2, 15, v1")
    g.e("v_lshrrev_b32 v3, 4, v1")
    g.e("s_lshl_b32 s54, s52, 6")
    g.e("s_lshl_b32 s58, s26, 4")
    g.e("s_add_u32 s54, s54, s58")
    g.e("v_add_u32 v4, s54, v2")
    g.e("v_mul_u32_u24 v5, 1280, v4")
    g.e("s_mul_i32 s55, s53, 160")
    g.e("v_lshlrev_b32 v6, 3, v3")
    g.e("v_add_u32 v5, v5, v6")
    g.e("v_add_u32 v30, s55, v5")
    XSZ = 16384
    WSZ = 20480
    if isk2:
        XB_L = 0
        WB_L = 5 * XSZ
        NST = 3
    else:
        XB_L = 0
        NST = 4
        WB_L = NST * XSZ
    ldx = 1280 if isk2 else 3456
    if not isk2:
        g.e("v_lshrrev_b32 v4, 4, v1")
        g.e("v_and_b32 v5, 15, v1")
        g.e("s_lshl_b32 s58, s26, 4")
        for jj in range(4):
            g.e("v_add_u32 v6, s58, v4")
            g.e(f"v_add_u32 v6, {4*jj}, v6")
            g.e("v_and_b32 v7, 15, v6")
            g.e("v_xor_b32 v7, v7, v5")
            g.e("v_lshlrev_b32 v7, 4, v7")
            g.e(f"v_mul_u32_u24 v6, {ldx}, v6")
            g.e(f"v_add_u32 v{10+jj}, v6, v7")
    g.e("s_mul_i32 s58, s26, 320")
    for jj in range(5):
        g.e("v_add_u32 v4, s58, v1")
        g.e(f"v_add_u32 v4, {64*jj}, v4")
        emit_divmod(g, 4, 5, 6, 10, 1280, 7)
        g.e("v_and_b32 v7, 0x73, v5")
        g.e("v_and_b32 v8, 4, v5")
        g.e("v_lshlrev_b32 v8, 1, v8")
        g.e("v_or_b32 v7, v7, v8")
        g.e("v_and_b32 v8, 8, v5")
        g.e("v_lshrrev_b32 v8, 1, v8")
        g.e("v_or_b32 v7, v7, v8")
        g.e("v_mul_u32_u24 v7, 1280, v7")
        g.e("v_lshlrev_b32 v6, 4, v6")
        g.e(f"v_add_u32 v{14+jj}, v7, v6")
    g.e(f"s_mul_i32 s60, s52, {64*ldx}")
    g.e("s_mul_i32 s61, s53, 160")
    g.e("s_lshl_b32 s62, s26, 12")
    g.e("s_mul_i32 s63, s26, 5120")
    g.e("s_lshl_b32 s58, s26, 4")
    g.e("v_add_u32 v4, s58, v2")
    g.e("v_and_b32 v5, 15, v4")
    for kk in range(4):
        g.e(f"v_add_u32 v6, {4*kk}, v3")
        g.e("v_xor_b32 v6, v6, v5")
        g.e("v_lshlrev_b32 v6, 4, v6")
        g.e("v_lshlrev_b32 v7, 8, v4")
        g.e(f"v_add_u32 v{20+kk}, v6, v7")
        g.e(f"v_add_u32 v{32+kk}, 0x8000, v{20+kk}")
    g.e("v_lshrrev_b32 v4, 2, v2")
    g.e("v_and_b32 v5, 3, v2")
    g.e("v_lshrrev_b32 v6, 1, v3")
    g.e("v_lshlrev_b32 v6, 4, v6")
    g.e("v_and_b32 v7, 1, v3")
    g.e("v_lshlrev_b32 v7, 2, v7")
    g.e("v_add_u32 v4, v4, v6")
    g.e("v_add_u32 v4, v4, v7")
    g.e("v_mul_u32_u24 v4, 160, v4")
    g.e("v_lshlrev_b32 v5, 3, v5")
    g.e("v_add_u32 v4, v4, v5")
    g.e(f"v_add_u32 v24, {WB_L}, v4")
    g.e(f"v_add_u32 v25, {WB_L+40960}, v4")

    if isk2:
        ts(g, 4)
        hb = 8
        g.e("s_lshl_b32 s58, s26, 15")
        g.e("v_lshlrev_b32 v4, 7, v2")
        g.e("v_lshlrev_b32 v5, 5, v3")
        g.e("v_add_u32 v4, v4, v5")
        g.e("v_add_u32 v4, s58, v4")
        g.e("s_lshl_b32 s54, s52, 6")
        g.e("v_add_u32 v5, s54, v2")
        g.e("v_mul_u32_u24 v5, 1280, v5")
        g.e("v_lshlrev_b32 v6, 4, v3")
        g.e("v_add_u32 v5, v5, v6")
        g.e("s_mul_i32 s59, s26, 320")
        g.e("v_add_u32 v5, s59, v5")
        g.e("v_cmp_gt_u32 s[72:73], 3, v3")
        g.e("v_cmp_gt_u32 s[74:75], 2, v3")
        DEPTH = 5

        def head_loads(hh):
            base = 40 + 32 * (hh % DEPTH)
            for bb in range(2):
                g.e(f"buffer_load_dwordx4 v[{base+8*bb}:{base+3+8*bb}], v4, s[68:71], 0 offen offset:{2048*bb}")
                g.e(f"buffer_load_dwordx4 v[{base+4+8*bb}:{base+7+8*bb}], v4, s[68:71], 0 offen offset:{2048*bb+16}")
            for rb in range(4):
                g.e(f"s_mov_b32 s59, {16*rb*1280}")
                g.e(f"buffer_load_dwordx4 v[{base+16+4*rb}:{base+19+4*rb}], v5, s[28:31], s59 offen")
            g.e("v_add_u32 v4, 4096, v4")
            g.e("v_add_u32 v5, 40, v5")

        for hh in range(DEPTH):
            head_loads(hh)
        issued = DEPTH
        for hh in range(hb):
            base = 40 + 32 * (hh % DEPTH)
            g.e(f"s_waitcnt vmcnt({8*(issued-hh-1)})")
            for bb in range(2):
                for p in range(4):
                    g.e(f"v_cvt_pk_bf16_f32 v{200+4*bb+p}, v{base+8*bb+2*p}, v{base+1+8*bb+2*p}")
            for rb in range(4):
                r = base + 16 + 4 * rb
                g.e(f"v_cndmask_b32 v{r}, 0, v{r}, s[72:73]")
                g.e(f"v_cndmask_b32 v{r+1}, 0, v{r+1}, s[72:73]")
                g.e(f"v_cndmask_b32 v{r+2}, 0, v{r+2}, s[74:75]")
                g.e(f"v_cndmask_b32 v{r+3}, 0, v{r+3}, s[74:75]")
            for r in range(32):
                g.e(f"v_mov_b32 v{208+r}, 0")
            g.e("s_nop 1")
            for rb in range(4):
                for bb in range(2):
                    a_ = 208 + 8 * rb + 4 * bb
                    g.e(f"v_mfma_f32_16x16x32_bf16 v[{a_}:{a_+3}], v[{200+4*bb}:{203+4*bb}], v[{base+16+4*rb}:{base+19+4*rb}], v[{a_}:{a_+3}]")
            if issued < hb:
                head_loads(issued)
                issued += 1
            else:
                g.e("s_nop 7")
                g.e("s_nop 1")
            g.e("s_nop 3")
            g.e("v_lshlrev_b32 v6, 2, v2")
            g.e("v_add_u32 v6, 64, v6")
            for rb in range(4):
                g.e(f"ds_bpermute_b32 v{240+rb}, v6, v{208+8*rb+4}")
            g.e("s_waitcnt lgkmcnt(0)")
            for rb in range(4):
                g.e(f"v_add_f32 v{240+rb}, {f2u(1e-6)}, v{240+rb}")
                g.e(f"v_rcp_f32 v{240+rb}, v{240+rb}")
            g.e("s_nop 0")
            g.e(f"s_mul_i32 s59, s26, 160")
            g.e(f"s_add_u32 s59, s59, {20*hh}")
            for bb in range(2):
                g.e("v_lshlrev_b32 v7, 2, v3")
                g.e("v_add_u32 v7, s59, v7")
                if bb == 1:
                    g.e("v_add_u32 v7, 16, v7")
                g.e("v_lshrrev_b32 v8, 7, v7")
                g.e("v_lshlrev_b32 v8, 14, v8")
                g.e("v_and_b32 v9, 127, v7")
                g.e("v_lshrrev_b32 v9, 3, v9")
                g.e("v_and_b32 v7, 7, v7")
                g.e("v_lshlrev_b32 v7, 1, v7")
                g.e("v_add_u32 v8, v8, v7")
                g.e("v_xor_b32 v246, v9, v2")
                g.e("v_lshlrev_b32 v246, 4, v246")
                g.e("v_lshlrev_b32 v247, 8, v2")
                g.e("v_add3_u32 v246, v246, v247, v8")
                for rb in range(4):
                    a_ = 208 + 8 * rb + 4 * bb
                    for r in range(4):
                        g.e(f"v_mul_f32 v{a_+r}, v{a_+r}, v{240+rb}")
                    g.e(f"v_cvt_pk_bf16_f32 v244, v{a_}, v{a_+1}")
                    g.e(f"v_cvt_pk_bf16_f32 v245, v{a_+2}, v{a_+3}")
                    if bb == 1:
                        g.e("v_cmp_eq_u32 vcc, 0, v3")
                        g.e("s_and_saveexec_b64 s[56:57], vcc")
                    g.e(f"ds_write_b64 v246, v[244:245] offset:{16*rb*256}")
                    if bb == 1:
                        g.e("s_mov_b64 exec, s[56:57]")
        g.e("s_waitcnt lgkmcnt(0)")

    for nb in range(5):
        g.e(f"buffer_load_dwordx2 v[{220+2*nb}:{221+2*nb}], v30, s[36:39], 0 offen offset:{32*nb}")
    if not isk2:
        g.e("s_mul_i32 s55, s53, 160")
        g.e("v_lshlrev_b32 v6, 3, v3")
        g.e("v_add_u32 v6, s55, v6")
        for nb in range(5):
            g.e(f"buffer_load_dwordx2 v[{230+2*nb}:{231+2*nb}], v6, s[68:71], 0 offen offset:{32*nb}")
    nstep = 5 if isk2 else 14
    Loop(g, mf=16, BS=64, BN=80, BK=128, nstep=nstep, nstage=NST, xb=XB_L, xsz=XSZ, wb=WB_L, wsz=WSZ,
         sblks=[0], nblks=[0, 1, 2, 3, 4], transposed=True, acc0=100, fr0=40, fr1=64,
         vx_dma=10, vw_dma=14, nx_dma=4, nw_dma=5, vx_rd=20, vw_rd=24,
         s_xoff=60, s_woff=61, s_m0x=62, s_m0w=63, xstep_bytes=256, wstep_bytes=128 * 1280,
         x_resident=isk2, last_sub=(None if isk2 else 2),
         w_imm_nb=lambda i, nb: (24, 32 * nb), vw_hi=25, w_hi_delta=40960, vx_hi=32, x_hi_delta=32768).run()
    g.e("s_waitcnt vmcnt(0) lgkmcnt(0)")
    ts(g, 1)
    for nb in range(5):
        for p in range(2):
            g.e(f"v_lshlrev_b32 v{40+4*nb+2*p}, 16, v{220+2*nb+p}")
            g.e(f"v_and_b32 v{41+4*nb+2*p}, 0xffff0000, v{220+2*nb+p}")
            if not isk2:
                g.e(f"v_lshlrev_b32 v{60+4*nb+2*p}, 16, v{230+2*nb+p}")
                g.e(f"v_and_b32 v{61+4*nb+2*p}, 0xffff0000, v{230+2*nb+p}")
    for nb in range(5):
        for j in range(4):
            a = 100 + 4 * nb + j
            if not isk2:
                g.e(f"v_add_f32 v{a}, v{a}, v{60+4*nb+j}")
            g.e(f"v_add_f32 v{a}, v{a}, v{40+4*nb+j}")
    for nb in range(5):
        g.e(f"v_cvt_pk_bf16_f32 v{80+2*nb}, v{100+4*nb}, v{101+4*nb}")
        g.e(f"v_cvt_pk_bf16_f32 v{81+2*nb}, v{102+4*nb}, v{103+4*nb}")
    for nb in range(5):
        g.e(f"buffer_store_dwordx2 v[{80+2*nb}:{81+2*nb}], v30, s[44:47], 0 offen offset:{32*nb}")
    for nb in range(5):
        for p in range(2):
            g.e(f"v_lshlrev_b32 v{100+4*nb+2*p}, 16, v{80+2*nb+p}")
            g.e(f"v_and_b32 v{101+4*nb+2*p}, 0xffff0000, v{80+2*nb+p}")
    g.e("v_add_f32 v4, v100, v101")
    for i in range(2, 20):
        g.e(f"v_add_f32 v4, v4, v{100+i}")
    g.e("ds_swizzle_b32 v5, v4 offset:0x401F")
    g.e("s_waitcnt lgkmcnt(0)")
    g.e("v_add_f32 v4, v4, v5")
    g.e("v_mov_b32 v5, v4")
    g.e("s_nop 1")
    g.e("v_permlane32_swap_b32 v5, v5") if False else None
    g.e("v_xor_b32 v6, 32, v1")
    g.e("v_lshlrev_b32 v6, 2, v6")
    g.e("ds_bpermute_b32 v5, v6, v4")
    g.e("s_waitcnt lgkmcnt(0)")
    g.e("v_add_f32 v4, v4, v5")
    g.e(f"v_mul_f32 v7, {f2u(1.0/80.0)}, v4")
    g.e("v_mov_b32 v8, 0")
    for i in range(20):
        g.e(f"v_sub_f32 v9, v{100+i}, v7")
        g.e("v_fma_f32 v8, v9, v9, v8")
    g.e("ds_swizzle_b32 v5, v8 offset:0x401F")
    g.e("s_waitcnt lgkmcnt(0)")
    g.e("v_add_f32 v8, v8, v5")
    g.e("ds_bpermute_b32 v5, v6, v8")
    g.e("s_waitcnt lgkmcnt(0)")
    g.e("v_add_f32 v5, v8, v5")
    g.e("s_lshl_b32 s54, s52, 6")
    g.e("s_lshl_b32 s58, s26, 4")
    g.e("s_add_u32 s54, s54, s58")
    g.e("v_add_u32 v10, s54, v2")
    g.e("v_lshlrev_b32 v10, 6, v10")
    g.e("s_lshl_b32 s55, s53, 3")
    g.e("v_cmp_eq_u32 vcc, 0, v3")
    g.e("s_and_saveexec_b64 s[56:57], vcc")
    g.e("buffer_store_dwordx2 v[4:5], v10, s[48:51], s55 offen")
    g.e("s_mov_b64 exec, s[56:57]")
    ts(g, 2)
    g.e("s_waitcnt vmcnt(0)")
    ts(g, 3)
    g.lab(f"K{which}_end")
    g.e("s_endpgm")


def main():
    g = Gen()
    hdr = open(OUT + ".ref").read().split("; Override launch geometry")[0]
    g.raw(hdr.rstrip("\n"))
    launches = [
        ("k0_prep_kernel", 201, 24576),
        ("k1_l0_kernel", 192, 114688),
        ("k2_l0_kernel", 256, 143360),
        ("k3_l0_kernel", 216, 126976),
        ("k4_l0_kernel", 256, 147456),
        ("k1_l1_kernel", 192, 114688),
        ("k2_l1_kernel", 256, 143360),
        ("k3_l1_kernel", 216, 126976),
        ("k4_l1_kernel", 256, 147456),
    ]
    for (k, gx, lds) in launches:
        g.raw(f"; @launch kernel={k} grid=({gx},1,1) block=(256,1,1) lds={lds}")
    g.raw('.amdgcn_target "amdgcn-amd-amdhsa--gfx950"')
    g.raw(".text")
    gen_k0(g)
    gen_k1(g)
    gen_k3(g)
    gen_k24(g, 2)
    gen_k24(g, 4)
    g.raw('.section .rodata,"a"')
    for (name, vg, sg) in KERNELS:
        g.raw(".p2align 6")
        g.raw(f".amdhsa_kernel {name}")
        g.raw(f"  .amdhsa_next_free_vgpr {vg}")
        g.raw(f"  .amdhsa_next_free_sgpr {sg}")
        g.raw(f"  .amdhsa_accum_offset {vg}")
        g.raw("  .amdhsa_group_segment_fixed_size 0")
        g.raw("  .amdhsa_kernarg_size 88")
        g.raw("  .amdhsa_user_sgpr_count 2")
        g.raw("  .amdhsa_user_sgpr_kernarg_segment_ptr 1")
        g.raw("  .amdhsa_system_sgpr_workgroup_id_x 1")
        g.raw(".end_amdhsa_kernel")
    open(OUT, "w").write("\n".join(g.L) + "\n")
    print("wrote", OUT, len(g.L), "lines")


if __name__ == "__main__":
    main()
```

```python
import sys

OUT = "interleave_layers__linear_attn_block__dense_activation_gelu__prompt.s"

WS_X1 = 0x0
WS_X2 = 0x300000
WS_X3 = 0x600000
WS_PQ = 0x900000
WS_H = 0xC00000
WS_KV = 0x1400000
WS_KV_L = 0x20000
WS_CSQ = 0x1440000
WS_CS1 = 0x1444000
WS_ST = 0x1480000
WS_ST_V = 0x20000

XB = 2048 * 640 * 2
HB = 2048 * 1728 * 2

LOG2E = 1.4426950408889634


def f2u(x):
    import struct
    return struct.unpack("<I", struct.pack("<f", x))[0]


class Gen:
    def __init__(self):
        self.L = []

    def e(self, s):
        self.L.append("    " + s)

    def c(self, s):
        self.L.append("    ; " + s)

    def lab(self, s):
        self.L.append(s + ":")

    def raw(self, s):
        self.L.append(s)


def srd_from(g, s, lo, hi, nbytes):
    g.e(f"s_mov_b32 s{s}, s{lo}")
    g.e(f"s_mov_b32 s{s+1}, s{hi}")
    g.e(f"s_mov_b32 s{s+2}, {nbytes}")
    g.e(f"s_mov_b32 s{s+3}, 0x00020000")


def srd_ws(g, s, off, nbytes, tmp=98):
    g.e(f"s_add_u32 s{s}, s24, {off}")
    g.e(f"s_addc_u32 s{s+1}, s25, 0")
    g.e(f"s_mov_b32 s{s+2}, {nbytes}")
    g.e(f"s_mov_b32 s{s+3}, 0x00020000")


def load_kernargs(g):
    if DBG_TS:
        g.e("s_memtime s[86:87]")
    g.e("s_load_dwordx16 s[4:19], s[0:1], 0")
    g.e("s_load_dwordx4 s[20:23], s[0:1], 64")
    g.e("s_load_dwordx2 s[24:25], s[0:1], 80")


KERNELS = []
DBG_TS = False
WS_TS = 0x1800000


def ts(g, idx):
    if not DBG_TS:
        return
    if idx == 7:
        g.e("s_mov_b64 s[92:93], s[86:87]")
    else:
        g.e("s_memtime s[92:93]")
    g.e(f"s_add_u32 s88, s24, {WS_TS}")
    g.e("s_addc_u32 s89, s25, 0")
    g.e("s_mov_b32 s90, 0x100000")
    g.e("s_mov_b32 s91, 0x00020000")
    g.e("s_waitcnt lgkmcnt(0)")
    g.e("v_mov_b32 v250, s92")
    g.e("s_lshl_b32 s94, s2, 7")
    g.e("s_lshl_b32 s95, s26, 5")
    g.e("s_add_u32 s94, s94, s95")
    g.e("v_mov_b32 v251, s94")
    g.e("v_cmp_eq_u32 vcc, 0, v1")
    g.e("s_and_saveexec_b64 s[96:97], vcc")
    g.e(f"buffer_store_dword v250, v251, s[88:91], 0 offen offset:{4*idx}")
    g.e("s_mov_b64 exec, s[96:97]")


def kernel_begin(g, name):
    g.raw(f".globl {name}")
    g.raw(".p2align 8")
    g.raw(f".type {name},@function")
    g.lab(name)


def gen_k0(g):
    kernel_begin(g, "k0_prep_kernel")
    load_kernargs(g)
    g.e("s_cmp_ge_u32 s2, 201")
    g.e("s_cbranch_scc1 K0_end")
    g.e("s_waitcnt lgkmcnt(0)")
    g.e("s_cmp_ge_u32 s2, 185")
    g.e("s_cbranch_scc1 K0_zero")
    g.e("s_cmp_ge_u32 s2, 128")
    g.e("s_cbranch_scc1 K0_colsum")
    srd_from(g, 28, 4, 5, XB)
    srd_ws(g, 32, WS_ST, WS_ST_V)
    g.e("v_lshrrev_b32 v1, 4, v0")
    g.e("s_lshl_b32 s3, s2, 4")
    g.e("v_add_u32 v1, s3, v1")
    g.e("v_and_b32 v2, 15, v0")
    g.e("v_mul_u32_u24 v3, 1280, v1")
    g.e("v_mul_u32_u24 v4, 80, v2")
    g.e("v_add_u32 v3, v3, v4")
    for i in range(5):
        g.e(f"buffer_load_dwordx4 v[{8+4*i}:{11+4*i}], v3, s[28:31], 0 offen offset:{16*i}")
    g.e("s_waitcnt vmcnt(0)")
    for i in range(20):
        g.e(f"v_lshlrev_b32 v{32+2*i}, 16, v{8+i}")
        g.e(f"v_and_b32 v{33+2*i}, 0xffff0000, v{8+i}")
    g.e("v_add_f32 v5, v32, v33")
    for i in range(2, 40):
        g.e(f"v_add_f32 v5, v5, v{32+i}")
    g.e("s_nop 1")
    g.e("v_add_f32_dpp v6, v5, v5 quad_perm:[1,0,3,2] row_mask:0xf bank_mask:0xf")
    g.e(f"v_mul_f32 v7, {f2u(1.0/80.0)}, v6")
    g.e("v_mov_b32 v8, 0")
    for i in range(40):
        g.e(f"v_sub_f32 v9, v{32+i}, v7")
        g.e(f"v_fma_f32 v8, v9, v9, v8")
    g.e("s_nop 1")
    g.e("v_add_f32_dpp v7, v8, v8 quad_perm:[1,0,3,2] row_mask:0xf bank_mask:0xf")
    g.e("v_lshlrev_b32 v10, 6, v1")
    g.e("v_lshrrev_b32 v11, 1, v2")
    g.e("v_lshlrev_b32 v11, 3, v11")
    g.e("v_add_u32 v10, v10, v11")
    g.e("v_and_b32 v11, 1, v2")
    g.e("v_cmp_eq_u32 vcc, 0, v11")
    g.e("s_and_saveexec_b64 s[40:41], vcc")
    g.e("buffer_store_dwordx2 v[6:7], v10, s[32:35], 0 offen")
    g.e("s_mov_b64 exec, s[40:41]")
    g.e("s_endpgm")
    g.lab("K0_colsum")
    g.e("s_sub_u32 s3, s2, 128")
    g.e("s_cmp_ge_u32 s3, 30")
    g.e("s_cbranch_scc1 K0_cs_w1")
    srd_from(g, 28, 6, 7, 640 * 1920 * 2)
    srd_ws(g, 32, WS_CSQ, 1920 * 4)
    g.e("s_movk_i32 s42, 3840")
    g.e("s_branch K0_cs_go")
    g.lab("K0_cs_w1")
    g.e("s_sub_u32 s3, s3, 30")
    srd_from(g, 28, 12, 13, 640 * 1728 * 2)
    srd_ws(g, 32, WS_CS1, 1728 * 4)
    g.e("s_movk_i32 s42, 3456")
    g.lab("K0_cs_go")
    g.e("v_and_b32 v1, 7, v0")
    g.e("v_lshrrev_b32 v2, 3, v0")
    g.e("v_mul_lo_u32 v3, s42, v2")
    g.e("v_lshlrev_b32 v4, 4, v1")
    g.e("v_add_u32 v3, v3, v4")
    g.e("s_lshl_b32 s43, s3, 7")
    g.e("s_lshl_b32 s44, s42, 5")
    for i in range(20):
        g.e(f"buffer_load_dwordx4 v[{8+4*i}:{11+4*i}], v3, s[28:31], s43 offen")
        if i < 19:
            g.e("s_add_u32 s43, s43, s44")
    g.e("s_waitcnt vmcnt(0)")
    for j in range(8):
        g.e(f"v_mov_b32 v{100+j}, 0")
    for i in range(20):
        for d in range(4):
            g.e(f"v_lshlrev_b32 v96, 16, v{8+4*i+d}")
            g.e(f"v_and_b32 v97, 0xffff0000, v{8+4*i+d}")
            g.e(f"v_add_f32 v{100+2*d}, v{100+2*d}, v96")
            g.e(f"v_add_f32 v{101+2*d}, v{101+2*d}, v97")
    g.e("v_lshlrev_b32 v4, 8, v2")
    g.e("v_lshlrev_b32 v5, 5, v1")
    g.e("v_add_u32 v4, v4, v5")
    g.e("ds_write_b128 v4, v[100:103]")
    g.e("ds_write_b128 v4, v[104:107] offset:16")
    g.e("s_waitcnt lgkmcnt(0)")
    g.e("s_barrier")
    g.e("v_cmp_gt_u32 vcc, 64, v0")
    g.e("s_and_saveexec_b64 s[40:41], vcc")
    g.e("s_cbranch_execz K0_cs_done")
    g.e("v_lshlrev_b32 v4, 2, v0")
    for i in range(32):
        g.e(f"ds_read_b32 v{8+i}, v4 offset:{256*i}")
    g.e("s_waitcnt lgkmcnt(0)")
    for i in range(1, 32):
        g.e(f"v_add_f32 v8, v8, v{8+i}")
    g.e("s_lshl_b32 s43, s3, 8")
    g.e("buffer_store_dword v8, v4, s[32:35], s43 offen")
    g.lab("K0_cs_done")
    g.e("s_mov_b64 exec, s[40:41]")
    g.e("s_endpgm")
    g.lab("K0_zero")
    srd_ws(g, 32, WS_KV, 2 * WS_KV_L)
    g.e("s_sub_u32 s3, s2, 185")
    g.e("s_lshl_b32 s3, s3, 14")
    g.e("v_lshlrev_b32 v1, 4, v0")
    for j in range(4):
        g.e(f"v_mov_b32 v{4+j}, 0")
    for j in range(4):
        g.e(f"buffer_store_dwordx4 v[4:7], v1, s[32:35], s3 offen offset:{4096*j if j < 1 else 0}" if False else
            f"buffer_store_dwordx4 v[4:7], v1, s[32:35], s3 offen")
        if j < 3:
            g.e("s_add_u32 s3, s3, 4096")
    g.lab("K0_end")
    g.e("s_endpgm")
    KERNELS.append(("k0_prep_kernel", 128, 64))


def div_magic(n, qmax):
    for S in range(8, 24):
        M = (1 << S) // n + 1
        if M >= (1 << 24):
            continue
        if all(((q * M) >> S) == q // n for q in range(qmax)):
            return M, S
    raise RuntimeError("no magic")


def emit_divmod(g, vq, vdiv, vmod, n, qmax, vt):
    M, S = div_magic(n, qmax)
    g.e(f"v_mov_b32 v{vt}, {M}")
    g.e(f"v_mul_u32_u24 v{vdiv}, v{vt}, v{vq}")
    g.e(f"v_lshrrev_b32 v{vdiv}, {S}, v{vdiv}")
    g.e(f"v_mul_u32_u24 v{vt}, {n}, v{vdiv}")
    g.e(f"v_sub_u32 v{vmod}, v{vq}, v{vt}")


class Loop:
    def __init__(self, g, mf, BS, BN, BK, nstep, nstage, xb, xsz, wb, wsz,
                 sblks, nblks, transposed, acc0, fr0, fr1,
                 vx_dma, vw_dma, nx_dma, nw_dma, vx_rd, vw_rd,
                 s_xoff, s_woff, s_m0x, s_m0w, xstep_bytes, wstep_bytes,
                 x_resident=False, last_sub=None, w_imm_nb=None, sx_srd=28, sw_srd=32,
                 extra_at_step0=None, vx_hi=None, x_hi_delta=0, vw_hi=None, w_hi_delta=0):
        self.__dict__.update(locals())

    def dma_pieces(self, st):
        slot = st % self.nstage
        out = []
        if not self.x_resident:
            for j in range(self.nx_dma):
                grp = [f"s_add_u32 m0, s{self.s_m0x}, {self.xb + slot*self.xsz + 1024*j}",
                       "s_nop 0",
                       f"buffer_load_dwordx4 v{self.vx_dma+j}, s[{self.sx_srd}:{self.sx_srd+3}], s{self.s_xoff} offen lds"]
                if j == self.nx_dma - 1:
                    grp.append(f"s_add_u32 s{self.s_xoff}, s{self.s_xoff}, {self.xstep_bytes}")
                out.append(grp)
        for j in range(self.nw_dma):
            grp = [f"s_add_u32 m0, s{self.s_m0w}, {self.wb + slot*self.wsz + 1024*j}",
                   "s_nop 0",
                   f"buffer_load_dwordx4 v{self.vw_dma+j}, s[{self.sw_srd}:{self.sw_srd+3}], s{self.s_woff} offen lds"]
            if j == self.nw_dma - 1:
                grp.append(f"s_add_u32 s{self.s_woff}, s{self.s_woff}, {self.wstep_bytes}")
            out.append(grp)
        return out

    def read_list(self, st, kk, fr):
        slot = st % self.nstage
        out = []
        ksub = 16 if self.mf == 32 else 32
        for i, sb in enumerate(self.sblks):
            off = self.xb + (st if self.x_resident else slot) * self.xsz
            va = self.vx_rd + (i * (self.BK // ksub) + kk)
            if off >= 65536:
                va = self.vx_hi + (i * (self.BK // ksub) + kk)
                off -= self.x_hi_delta
            assert off < 65536
            out.append(f"ds_read_b128 v[{fr+4*i}:{fr+4*i+3}], v{va} offset:{off}")
        base = fr + 4 * len(self.sblks)
        pitch = self.BN * 2
        for i, nb in enumerate(self.nblks):
            va, imm = self.w_imm_nb(i, nb)
            off = slot * self.wsz + kk * ksub * pitch + imm
            hi2 = (4 if self.mf == 32 else 8) * pitch
            if off + hi2 >= 65536:
                va = self.vw_hi
                off -= self.w_hi_delta
            assert off + hi2 < 65536, (off, hi2)
            out.append(f"ds_read_b64_tr_b16 v[{base+4*i}:{base+4*i+1}], v{va} offset:{off}")
            out.append(f"ds_read_b64_tr_b16 v[{base+4*i+2}:{base+4*i+3}], v{va} offset:{off+hi2}")
        return out

    def mfma_list(self, fr):
        nacc = 16 if self.mf == 32 else 4
        op = "v_mfma_f32_32x32x16_bf16" if self.mf == 32 else "v_mfma_f32_16x16x32_bf16"
        base = fr + 4 * len(self.sblks)
        out = []
        for i, sb in enumerate(self.sblks):
            for j, nb in enumerate(self.nblks):
                a = self.acc0 + (i * len(self.nblks) + j) * nacc
                xf = f"v[{fr+4*i}:{fr+4*i+3}]"
                wf = f"v[{base+4*j}:{base+4*j+3}]"
                acc = f"v[{a}:{a+nacc-1}]"
                if self.transposed:
                    out.append(f"{op} {acc}, {wf}, {xf}, {acc}")
                else:
                    out.append(f"{op} {acc}, {xf}, {wf}, {acc}")
        return out

    def run(self):
        g = self.g
        ksub = 16 if self.mf == 32 else 32
        nsub = self.BK // ksub
        D = self.nw_dma + (0 if self.x_resident else self.nx_dma)
        NS = self.nstage
        nacc = 16 if self.mf == 32 else 4
        for r in range(len(self.sblks) * len(self.nblks) * nacc):
            g.e(f"v_mov_b32 v{self.acc0+r}, 0")
        for st in range(min(NS - 1, self.nstep)):
            for grp in self.dma_pieces(st):
                for l in grp:
                    g.e(l)
        subs = []
        for k in range(self.nstep):
            ns = nsub if (self.last_sub is None or k < self.nstep - 1) else self.last_sub
            for kk in range(ns):
                subs.append((k, kk))
        sets = [self.fr0, self.fr1]
        pending_dma = []

        def stage_entry(k):
            issued_after = min(k + NS - 2, self.nstep - 1) - k
            g.e(f"s_waitcnt vmcnt({D*issued_after + len(pending_dma)})")
            g.e("s_barrier")
            if k == 0 and self.extra_at_step0:
                self.extra_at_step0()
            if k + NS - 1 < self.nstep:
                pending_dma.extend(self.dma_pieces(k + NS - 1))

        stage_entry(0)
        for l in self.read_list(0, 0, sets[0]):
            g.e(l)
        for t, (k, kk) in enumerate(subs):
            g.e("s_waitcnt lgkmcnt(0)")
            fillers = []
            if t + 1 < len(subs):
                k2, kk2 = subs[t + 1]
                if k2 != k:
                    for grp in pending_dma:
                        for l in grp:
                            g.e(l)
                    pending_dma.clear()
                    stage_entry(k2)
                fillers = [[l] for l in self.read_list(k2, kk2, sets[(t + 1) & 1])]
            rem = 1
            for tt in range(t + 1, len(subs)):
                if subs[tt][0] == k:
                    rem += 1
            take = -(-len(pending_dma) // rem) if pending_dma else 0
            dm = pending_dma[:take]
            del pending_dma[:take]
            mf = self.mfma_list(sets[t & 1])
            nm = len(mf)
            slots = [[] for _ in range(nm)]
            for i, f in enumerate(fillers):
                slots[min(nm - 1, i * max(1, nm - 1) // max(1, len(fillers)))].append(f)
            for i, f in enumerate(dm):
                slots[min(nm - 1, 1 + i * (nm - 1) // max(1, len(dm)))].append(f)
            for i in range(nm):
                g.e(mf[i])
                for f in slots[i]:
                    for l in f:
                        g.e(l)
        g.e("s_nop 7")
        g.e("s_nop 7")


def wave_id_sgpr(g, sdst):
    g.e("v_lshrrev_b32 v1, 6, v0")
    g.e("s_nop 0")
    g.e(f"v_readfirstlane_b32 s{sdst}, v1")


def emit_row_stats_loads(g, nrows_pow2_log, srd, vrow, vdst):
    pass


def stats_finalize(g, vst, vout_rs, vout_nm, vt):
    g.e(f"v_add_f32 v{vt}, v{vst}, v{vst+2}")
    for t in range(2, 8):
        g.e(f"v_add_f32 v{vt}, v{vt}, v{vst+2*t}")
    g.e(f"v_mul_f32 v{vt}, {f2u(1.0/640.0)}, v{vt}")
    g.e(f"v_add_f32 v{vt+1}, v{vst+1}, v{vst+3}")
    for t in range(2, 8):
        g.e(f"v_add_f32 v{vt+1}, v{vt+1}, v{vst+2*t+1}")
    for t in range(8):
        g.e(f"v_fma_f32 v{vt+2}, v{vst+2*t}, {hex(f2u(1.0/80.0)) if False else 's99'}, -v{vt}")
        g.e(f"v_mul_f32 v{vt+3}, v{vt+2}, v{vt+2}")
        g.e(f"v_fma_f32 v{vt+1}, v{vt+3}, s100, v{vt+1}")
    g.e(f"v_mul_f32 v{vt+1}, {f2u(1.0/640.0)}, v{vt+1}")
    g.e(f"v_add_f32 v{vt+1}, {f2u(1e-5)}, v{vt+1}")
    g.e(f"v_rsq_f32 v{vout_rs}, v{vt+1}")
    g.e("s_nop 0")
    g.e(f"v_mul_f32 v{vout_nm}, v{vout_rs}, v{vt}")
    g.e(f"v_sub_f32 v{vout_nm}, 0, v{vout_nm}")


def set_stats_consts(g):
    g.e(f"s_mov_b32 s99, {hex(f2u(1.0/80.0))}")
    g.e(f"s_mov_b32 s100, {hex(f2u(80.0))}")


def gen_k1(g):
    for L in range(2):
        kernel_begin(g, f"k1_l{L}_kernel")
        g.e(f"s_mov_b32 s101, {L}")
        g.e("s_branch K1_body")
        KERNELS.append((f"k1_l{L}_kernel", 256, 102))
    g.raw(".p2align 8")
    g.lab("K1_body")
    load_kernargs(g)
    g.e("s_cmp_ge_u32 s2, 192")
    g.e("s_cbranch_scc1 K1_end")
    set_stats_consts(g)
    wave_id_sgpr(g, 26)
    g.e("s_waitcnt lgkmcnt(0)")
    g.e(f"s_add_u32 s40, s24, {WS_X2}")
    g.e("s_addc_u32 s41, s25, 0")
    g.e("s_cmp_eq_u32 s101, 0")
    g.e("s_cselect_b32 s40, s4, s40")
    g.e("s_cselect_b32 s41, s5, s41")
    srd_from(g, 28, 40, 41, XB)
    srd_from(g, 32, 6, 7, 640 * 1920 * 2)
    g.e(f"s_mul_i32 s42, s101, {2*WS_ST_V}")
    g.e(f"s_add_u32 s42, s42, {WS_ST}")
    g.e("s_add_u32 s36, s24, s42")
    g.e("s_addc_u32 s37, s25, 0")
    g.e(f"s_mov_b32 s38, {WS_ST_V}")
    g.e("s_mov_b32 s39, 0x00020000")
    srd_ws(g, 44, WS_CSQ, 1920 * 4)
    srd_ws(g, 48, WS_PQ, XB)
    g.e("s_and_b32 s52, s2, 15")
    g.e("s_lshr_b32 s53, s2, 4")
    g.e("s_lshl_b32 s54, s52, 7")
    g.e("v_add_u32 v1, s54, v0")
    g.e("v_lshlrev_b32 v1, 6, v1")
    g.e("v_cmp_gt_u32 vcc, 128, v0")
    g.e("s_and_saveexec_b64 s[56:57], vcc")
    for i in range(4):
        g.e(f"buffer_load_dwordx4 v[{180+4*i}:{183+4*i}], v1, s[36:39], 0 offen offset:{16*i}")
    g.e("s_mov_b64 exec, s[56:57]")
    g.e("s_cmp_ge_u32 s53, 8")
    g.e("s_cbranch_scc1 K1_csq")
    g.e("s_mul_i32 s55, s53, 320")
    g.e("s_add_u32 s55, s55, 2560")
    g.e("v_lshlrev_b32 v2, 4, v0")
    g.e("v_cmp_le_u32 vcc, 20, v0")
    g.e("s_nop 1")
    g.e("v_mov_b32 v3, 2240")
    g.e("v_cndmask_b32 v3, 0, v3, vcc")
    g.e("v_add_u32 v2, v2, v3")
    g.e("s_branch K1_csgo")
    g.lab("K1_csq")
    g.e("s_sub_u32 s55, s53, 8")
    g.e("s_mul_i32 s55, s55, 640")
    g.e("v_lshlrev_b32 v2, 4, v0")
    g.lab("K1_csgo")
    g.e("v_cmp_gt_u32 vcc, 40, v0")
    g.e("s_and_saveexec_b64 s[56:57], vcc")
    g.e("buffer_load_dwordx4 v[196:199], v2, s[44:47], s55 offen")
    g.e("s_mov_b64 exec, s[56:57]")

    g.e("v_and_b32 v1, 63, v0")
    g.e("v_lshrrev_b32 v2, 3, v1")
    g.e("v_and_b32 v3, 7, v1")
    g.e("s_lshl_b32 s58, s26, 5")
    for jj in range(4):
        g.e(f"v_add_u32 v4, s58, v2")
        g.e(f"v_add_u32 v4, {8*jj}, v4")
        g.e("v_lshrrev_b32 v5, 1, v4")
        g.e("v_and_b32 v5, 7, v5")
        g.e("v_xor_b32 v5, v5, v3")
        g.e("v_lshlrev_b32 v5, 4, v5")
        g.e("v_mul_u32_u24 v4, 1280, v4")
        g.e(f"v_add_u32 v{10+jj}, v4, v5")
    g.e("s_mul_i32 s58, s26, 320")
    g.e("s_cmp_ge_u32 s53, 8")
    g.e("s_cselect_b32 s59, 0, 1120")
    for jj in range(5):
        g.e(f"v_add_u32 v4, s58, v1")
        g.e(f"v_add_u32 v4, {64*jj}, v4")
        emit_divmod(g, 4, 5, 6, 20, 1280, 7)
        g.e("v_mul_u32_u24 v5, 3840, v5")
        g.e("v_lshlrev_b32 v7, 4, v6")
        g.e("v_add_u32 v5, v5, v7")
        g.e("v_cmp_le_u32 vcc, 10, v6")
        g.e("v_mov_b32 v7, s59")
        g.e("s_nop 0")
        g.e("v_cndmask_b32 v7, 0, v7, vcc")
        g.e(f"v_add_u32 v{14+jj}, v5, v7")
    g.e("s_mul_i32 s60, s52, 163840")
    g.e("s_mul_i32 s61, s53, 160")
    g.e("s_add_u32 s61, s61, 1280")
    g.e("s_sub_u32 s62, s53, 8")
    g.e("s_mul_i32 s62, s62, 320")
    g.e("s_cmp_ge_u32 s53, 8")
    g.e("s_cselect_b32 s61, s62, s61")
    g.e("s_lshl_b32 s62, s26, 12")
    g.e("s_mul_i32 s63, s26, 5120")
    g.e("v_and_b32 v2, 31, v1")
    g.e("s_lshl_b32 s58, s26, 5")
    g.e("v_add_u32 v2, s58, v2")
    g.e("v_lshrrev_b32 v3, 5, v1")
    g.e("v_lshrrev_b32 v4, 1, v2")
    g.e("v_and_b32 v4, 7, v4")
    for kk in range(4):
        g.e(f"v_add_u32 v5, {2*kk}, v3")
        g.e("v_xor_b32 v5, v5, v4")
        g.e("v_lshlrev_b32 v5, 4, v5")
        g.e("v_lshlrev_b32 v6, 7, v2")
        g.e(f"v_add_u32 v{20+kk}, v5, v6")
    g.e("v_and_b32 v4, 15, v1")
    g.e("v_lshrrev_b32 v5, 2, v4")
    g.e("v_and_b32 v6, 3, v4")
    g.e("v_lshlrev_b32 v7, 3, v3")
    g.e("v_add_u32 v5, v5, v7")
    g.e("v_mul_u32_u24 v5, 320, v5")
    g.e("v_lshrrev_b32 v7, 4, v1")
    g.e("v_and_b32 v7, 1, v7")
    g.e("v_lshlrev_b32 v7, 5, v7")
    g.e("v_add_u32 v5, v5, v7")
    g.e("v_lshlrev_b32 v6, 3, v6")
    g.e("v_add_u32 v5, v5, v6")
    g.e("v_add_u32 v24, 69632, v5")
    g.e("v_add_u32 v25, 110592, v5")

    ST_L = 0
    CS_L = 1024
    KVR = 4096

    def extra0():
        g.e("v_cmp_gt_u32 vcc, 128, v0")
        g.e("s_and_saveexec_b64 s[56:57], vcc")
        stats_finalize(g, 180, 200, 201, 202)
        g.e("v_lshlrev_b32 v202, 3, v0")
        g.e(f"ds_write_b64 v202, v[200:201] offset:{ST_L}")
        g.e("s_mov_b64 exec, s[56:57]")
        g.e("v_cmp_gt_u32 vcc, 40, v0")
        g.e("s_and_saveexec_b64 s[56:57], vcc")
        g.e("v_lshlrev_b32 v202, 4, v0")
        g.e(f"ds_write_b128 v202, v[196:199] offset:{CS_L}")
        g.e("s_mov_b64 exec, s[56:57]")

    common = dict(mf=32, BS=128, BN=160, BK=64, nstep=10, nstage=4, xb=4096, xsz=16384, wb=69632, wsz=20480, vw_hi=25, w_hi_delta=40960,
                  sblks=[0], nblks=[0, 1, 2, 3, 4], acc0=100, fr0=40, fr1=64,
                  vx_dma=10, vw_dma=14, nx_dma=4, nw_dma=5, vx_rd=20, vw_rd=24,
                  s_xoff=60, s_woff=61, s_m0x=62, s_m0w=63, xstep_bytes=128, wstep_bytes=64 * 3840,
                  w_imm_nb=lambda i, nb: (24, 64 * nb), extra_at_step0=extra0)
    ts(g, 0)
    ts(g, 7)
    g.e("s_cmp_ge_u32 s53, 8")
    g.e("s_cbranch_scc1 K1_qpath")

    Loop(g, transposed=False, **common).run()
    g.e("s_waitcnt vmcnt(0) lgkmcnt(0)")
    ts(g, 1)
    g.e("s_barrier")
    g.e("v_and_b32 v1, 63, v0")
    g.e("v_and_b32 v2, 31, v1")
    g.e("v_lshrrev_b32 v3, 5, v1")
    g.e("s_lshl_b32 s58, s26, 5")
    g.e("v_lshlrev_b32 v4, 2, v3")
    g.e("v_add_u32 v4, s58, v4")
    g.e("v_lshlrev_b32 v4, 3, v4")
    for gg in range(4):
        g.e(f"ds_read_b128 v[{200+8*gg}:{203+8*gg}], v4 offset:{ST_L+64*gg}")
        g.e(f"ds_read_b128 v[{204+8*gg}:{207+8*gg}], v4 offset:{ST_L+64*gg+16}")
    g.e("v_lshlrev_b32 v5, 2, v2")
    for nb in range(5):
        g.e(f"ds_read_b32 v{232+nb}, v5 offset:{CS_L+128*nb}")
    g.e("s_waitcnt lgkmcnt(0)")
    g.e("s_barrier")
    g.e(f"s_mov_b32 s64, {hex(f2u(LOG2E))}")
    g.e(f"s_mov_b32 s65, {hex(f2u(1e-6))}")
    for nb in range(5):
        for j in range(16):
            a = 100 + 16 * nb + j
            rs = 200 + 2 * j
            g.e(f"v_mul_f32 v4, v{rs+1}, v{232+nb}")
            g.e(f"v_fma_f32 v{a}, v{rs}, v{a}, v4")
            if nb <= 2:
                g.e(f"v_mul_f32 v5, s64, v{a}")
                g.e("v_exp_f32 v5, v5")
                g.e(f"v_add_f32 v6, 1.0, v{a}")
                g.e(f"v_cmp_lt_f32 vcc, 0, v{a}")
                g.e("s_nop 1")
                g.e("v_cndmask_b32 v5, v5, v6, vcc")
                if nb < 2:
                    g.e(f"v_add_f32 v{a}, s65, v5")
                else:
                    g.e("v_add_f32 v5, s65, v5")
                    g.e("v_cmp_gt_u32 vcc, 16, v2")
                    g.e("s_nop 1")
                    g.e(f"v_cndmask_b32 v{a}, v{a}, v5, vcc")
    ts(g, 4)
    for nb in range(3):
        g.e(f"v_add_f32 v{240+nb}, v{100+16*nb}, v{101+16*nb}")
        for j in range(2, 16):
            g.e(f"v_add_f32 v{240+nb}, v{240+nb}, v{100+16*nb+j}")
    for nb in range(5):
        for p in range(8):
            g.e(f"v_cvt_pk_bf16_f32 v{40+8*nb+p}, v{100+16*nb+2*p}, v{101+16*nb+2*p}")
    g.e("s_nop 1")
    pairs = [(0, 2), (0, 3), (1, 3), (1, 4), (2, 4)]
    for pi in range(5):
        for r in range(16):
            g.e(f"v_mov_b32 v{100+16*pi+r}, 0")
    g.e("s_nop 1")
    for pi, (kb, vb) in enumerate(pairs):
        a = 100 + 16 * pi
        for gp in range(2):
            g.e(f"v_mfma_f32_32x32x16_bf16 v[{a}:{a+15}], v[{40+8*kb+4*gp}:{43+8*kb+4*gp}], v[{40+8*vb+4*gp}:{43+8*vb+4*gp}], v[{a}:{a+15}]")
    g.e("s_nop 7")
    g.e("s_nop 7")
    ts(g, 5)
    g.e("v_lshlrev_b32 v5, 2, v1")
    g.e("s_mul_i32 s58, s26, 21504")
    g.e("v_add_u32 v5, s58, v5")
    for pi in range(5):
        for r in range(16):
            g.e(f"ds_write_b32 v5, v{100+16*pi+r} offset:{KVR+(16*pi+r)*256}")
    for nb in range(3):
        g.e(f"ds_write_b32 v5, v{240+nb} offset:{KVR+20480+256*nb}")
    g.e("s_waitcnt lgkmcnt(0)")
    g.e("s_barrier")
    ts(g, 6)
    g.e(f"s_mul_i32 s42, s101, {WS_KV_L}")
    g.e(f"s_add_u32 s42, s42, {WS_KV}")
    g.e("s_add_u32 s36, s24, s42")
    g.e("s_addc_u32 s37, s25, 0")
    g.e(f"s_mov_b32 s38, {WS_KV_L}")
    g.e("s_mov_b32 s39, 0x00020000")
    g.e("s_lshl_b32 s42, s53, 14")
    for i in range(7):
        g.e(f"v_add_u32 v4, {256*i}, v0")
        if i == 6:
            g.e("v_cmp_gt_u32 vcc, 1680, v4")
            g.e("s_and_saveexec_b64 s[56:57], vcc")
        emit_divmod(g, 4, 5, 6, 420, 1792, 7)
        emit_divmod(g, 6, 9, 8, 20, 420, 7)
        g.e("v_mul_u32_u24 v10, 20, v5")
        g.e("v_add_u32 v11, v10, v8")
        g.e("v_add_u32 v12, v10, v9")
        g.e("v_add_u32 v12, 80, v12")
        g.e("v_cmp_eq_u32 vcc, 20, v9")
        g.e("v_lshrrev_b32 v14, 5, v11")
        g.e("v_lshrrev_b32 v15, 5, v12")
        g.e("v_add_u32 v14, v14, v15")
        g.e("v_subrev_u32 v14, 2, v14")
        g.e("v_and_b32 v15, 31, v11")
        g.e("v_lshrrev_b32 v16, 3, v15")
        g.e("v_lshlrev_b32 v16, 2, v16")
        g.e("v_and_b32 v17, 3, v15")
        g.e("v_add_u32 v16, v16, v17")
        g.e("v_lshlrev_b32 v14, 4, v14")
        g.e("v_add_u32 v14, v14, v16")
        g.e("v_lshlrev_b32 v14, 8, v14")
        g.e("v_lshrrev_b32 v16, 2, v15")
        g.e("v_and_b32 v16, 1, v16")
        g.e("v_lshlrev_b32 v16, 5, v16")
        g.e("v_and_b32 v17, 31, v12")
        g.e("v_add_u32 v16, v16, v17")
        g.e("v_lshlrev_b32 v16, 2, v16")
        g.e("v_add_u32 v14, v14, v16")
        g.e("v_lshrrev_b32 v16, 5, v11")
        g.e("v_lshlrev_b32 v16, 8, v16")
        g.e("v_lshlrev_b32 v17, 2, v15")
        g.e("v_add_u32 v16, v16, v17")
        g.e("v_add_u32 v16, 20480, v16")
        g.e("v_cndmask_b32 v14, v14, v16, vcc")
        g.e("v_add_u32 v23, 43008, v14")
        g.e("v_add_u32 v24, 43008, v16")
        g.e(f"ds_read_b32 v18, v14 offset:{KVR}")
        g.e(f"ds_read_b32 v25, v14 offset:{KVR+21504}")
        g.e(f"ds_read_b32 v26, v23 offset:{KVR}")
        g.e(f"ds_read_b32 v27, v23 offset:{KVR+21504}")
        g.e(f"ds_read_b32 v19, v16 offset:{KVR+128}")
        g.e(f"ds_read_b32 v28, v16 offset:{KVR+128+21504}")
        g.e(f"ds_read_b32 v29, v24 offset:{KVR+128}")
        g.e(f"ds_read_b32 v30, v24 offset:{KVR+128+21504}")
        g.e("v_lshlrev_b32 v20, 12, v5")
        g.e("v_lshlrev_b32 v21, 7, v9")
        g.e("v_lshlrev_b32 v22, 2, v8")
        g.e("v_add_u32 v21, v21, v22")
        g.e("v_add_u32 v20, v20, v21")
        g.e("s_waitcnt lgkmcnt(0)")
        g.e("v_add_f32 v18, v18, v25")
        g.e("v_add_f32 v26, v26, v27")
        g.e("v_add_f32 v18, v18, v26")
        g.e("v_add_f32 v19, v19, v28")
        g.e("v_add_f32 v29, v29, v30")
        g.e("v_add_f32 v19, v19, v29")
        g.e("v_add_f32 v19, v18, v19")
        g.e("v_cndmask_b32 v18, v18, v19, vcc")
        g.e("buffer_atomic_add_f32 v18, v20, s[36:39], s42 offen")
        if i == 6:
            g.e("s_mov_b64 exec, s[56:57]")
    ts(g, 2)
    g.e("s_waitcnt vmcnt(0)")
    ts(g, 3)
    g.e("s_endpgm")

    g.lab("K1_qpath")
    Loop(g, transposed=True, **common).run()
    g.e("s_waitcnt vmcnt(0) lgkmcnt(0)")
    ts(g, 1)
    g.e("v_and_b32 v1, 63, v0")
    g.e("v_and_b32 v2, 31, v1")
    g.e("v_lshrrev_b32 v3, 5, v1")
    g.e("s_lshl_b32 s58, s26, 5")
    g.e("v_add_u32 v2, s58, v2")
    g.e("v_lshlrev_b32 v4, 3, v2")
    g.e(f"ds_read_b64 v[200:201], v4 offset:{ST_L}")
    g.e("v_lshlrev_b32 v5, 4, v3")
    g.e("s_lshl_b32 s54, s52, 7")
    g.e("v_add_u32 v6, s54, v2")
    g.e("v_mul_u32_u24 v6, 1280, v6")
    g.e("s_sub_u32 s55, s53, 8")
    g.e("s_mul_i32 s55, s55, 320")
    g.e("v_lshlrev_b32 v7, 3, v3")
    g.e("v_add_u32 v6, v6, v7")
    g.e("v_add_u32 v6, s55, v6")
    g.e(f"s_mov_b32 s64, {hex(f2u(LOG2E))}")
    g.e(f"s_mov_b32 s65, {hex(f2u(1e-6))}")
    for nb in range(5):
        for gg in range(4):
            g.e(f"ds_read_b128 v[{204+4*gg}:{207+4*gg}], v5 offset:{CS_L+128*nb+32*gg}")
        g.e("s_waitcnt lgkmcnt(0)")
        for j in range(16):
            a = 100 + 16 * nb + j
            g.e(f"v_mul_f32 v8, v201, v{204+j}")
            g.e(f"v_fma_f32 v{a}, v200, v{a}, v8")
            g.e(f"v_mul_f32 v8, s64, v{a}")
            g.e("v_exp_f32 v8, v8")
            g.e(f"v_add_f32 v9, 1.0, v{a}")
            g.e(f"v_cmp_lt_f32 vcc, 0, v{a}")
            g.e("s_nop 1")
            g.e("v_cndmask_b32 v8, v8, v9, vcc")
            g.e(f"v_add_f32 v{a}, s65, v8")
        for gg in range(4):
            a = 100 + 16 * nb + 4 * gg
            g.e(f"v_cvt_pk_bf16_f32 v{10+2*gg}, v{a}, v{a+1}")
            g.e(f"v_cvt_pk_bf16_f32 v{11+2*gg}, v{a+2}, v{a+3}")
        for gg in range(4):
            g.e(f"buffer_store_dwordx2 v[{10+2*gg}:{11+2*gg}], v6, s[48:51], 0 offen offset:{64*nb+16*gg}")
        g.e("s_nop 1")
    ts(g, 2)
    g.e("s_waitcnt vmcnt(0)")
    ts(g, 3)
    g.lab("K1_end")
    g.e("s_endpgm")


def gen_k3(g):
    for L in range(2):
        kernel_begin(g, f"k3_l{L}_kernel")
        g.e(f"s_mov_b32 s101, {L}")
        g.e("s_branch K3_body")
        KERNELS.append((f"k3_l{L}_kernel", 256, 102))
    g.raw(".p2align 8")
    g.lab("K3_body")
    load_kernargs(g)
    g.e("s_cmp_ge_u32 s2, 216")
    g.e("s_cbranch_scc1 K3_end")
    set_stats_consts(g)
    wave_id_sgpr(g, 26)
    g.e("s_waitcnt lgkmcnt(0)")
    g.e(f"s_mul_i32 s42, s101, {WS_X3-WS_X1}")
    g.e(f"s_add_u32 s40, s24, s42")
    g.e("s_addc_u32 s41, s25, 0")
    srd_from(g, 28, 40, 41, XB)
    srd_from(g, 32, 12, 13, 640 * 1728 * 2)
    g.e(f"s_mul_i32 s42, s101, {2*WS_ST_V}")
    g.e(f"s_add_u32 s42, s42, {WS_ST+WS_ST_V}")
    g.e("s_add_u32 s36, s24, s42")
    g.e("s_addc_u32 s37, s25, 0")
    g.e(f"s_mov_b32 s38, {WS_ST_V}")
    g.e("s_mov_b32 s39, 0x00020000")
    srd_ws(g, 44, WS_CS1, 1728 * 4)
    srd_ws(g, 48, WS_H, HB)
    srd_from(g, 68, 14, 15, 1728 * 2)
    g.e("s_and_b32 s52, s2, 7")
    g.e("s_lshr_b32 s53, s2, 3")
    g.e("s_lshl_b32 s54, s52, 8")
    g.e("v_add_u32 v1, s54, v0")
    g.e("v_lshlrev_b32 v1, 6, v1")
    for i in range(4):
        g.e(f"buffer_load_dwordx4 v[{180+4*i}:{183+4*i}], v1, s[36:39], 0 offen offset:{16*i}")
    g.e("s_lshl_b32 s55, s53, 8")
    g.e("v_lshlrev_b32 v2, 4, v0")
    g.e("v_cmp_gt_u32 vcc, 16, v0")
    g.e("s_and_saveexec_b64 s[56:57], vcc")
    g.e("buffer_load_dwordx4 v[196:199], v2, s[44:47], s55 offen")
    g.e("s_mov_b64 exec, s[56:57]")
    g.e("s_lshl_b32 s55, s53, 7")
    g.e("v_cmp_gt_u32 vcc, 8, v0")
    g.e("s_and_saveexec_b64 s[56:57], vcc")
    g.e("buffer_load_dwordx4 v[224:227], v2, s[68:71], s55 offen")
    g.e("s_mov_b64 exec, s[56:57]")
    g.e("v_and_b32 v1, 63, v0")
    g.e("v_lshrrev_b32 v2, 3, v1")
    g.e("v_and_b32 v3, 7, v1")
    g.e("s_lshl_b32 s58, s26, 6")
    for jj in range(8):
        g.e("v_add_u32 v4, s58, v2")
        g.e(f"v_add_u32 v4, {8*jj}, v4")
        g.e("v_lshrrev_b32 v5, 1, v4")
        g.e("v_and_b32 v5, 7, v5")
        g.e("v_xor_b32 v5, v5, v3")
        g.e("v_lshlrev_b32 v5, 4, v5")
        g.e("v_mul_u32_u24 v4, 1280, v4")
        g.e(f"v_add_u32 v{10+jj}, v4, v5")
    g.e("s_lshl_b32 s58, s26, 4")
    for jj in range(2):
        g.e("v_add_u32 v4, s58, v2")
        g.e(f"v_add_u32 v4, {8*jj}, v4")
        g.e("v_lshrrev_b32 v5, 1, v4")
        g.e("v_and_b32 v5, 1, v5")
        g.e("v_lshlrev_b32 v5, 2, v5")
        g.e("v_xor_b32 v5, v5, v3")
        g.e("v_lshlrev_b32 v5, 4, v5")
        g.e("v_mul_u32_u24 v4, 3456, v4")
        g.e(f"v_add_u32 v{18+jj}, v4, v5")
    g.e("s_mul_i32 s60, s52, 327680")
    g.e("s_lshl_b32 s61, s53, 7")
    g.e("s_lshl_b32 s62, s26, 13")
    g.e("s_lshl_b32 s63, s26, 11")
    g.e("v_lshrrev_b32 v3, 5, v1")
    for sb in range(2):
        g.e("v_and_b32 v2, 31, v1")
        g.e("s_lshl_b32 s58, s26, 6")
        g.e("v_add_u32 v2, s58, v2")
        g.e(f"v_add_u32 v2, {32*sb}, v2")
        g.e("v_lshrrev_b32 v4, 1, v2")
        g.e("v_and_b32 v4, 7, v4")
        for kk in range(4):
            g.e(f"v_add_u32 v5, {2*kk}, v3")
            g.e("v_xor_b32 v5, v5, v4")
            g.e("v_lshlrev_b32 v5, 4, v5")
            g.e("v_lshlrev_b32 v6, 7, v2")
            g.e(f"v_add_u32 v{20+4*sb+kk}, v5, v6")
            g.e(f"v_add_u32 v{32+4*sb+kk}, 0x8000, v{20+4*sb+kk}")
    WB3 = 4096 + 3 * 32768
    g.e("v_and_b32 v4, 15, v1")
    g.e("v_lshrrev_b32 v5, 2, v4")
    g.e("v_and_b32 v6, 3, v4")
    g.e("v_lshlrev_b32 v7, 3, v3")
    g.e("v_add_u32 v7, v5, v7")
    g.e("v_lshlrev_b32 v7, 7, v7")
    g.e("v_lshrrev_b32 v8, 4, v1")
    g.e("v_and_b32 v8, 1, v8")
    g.e("v_lshlrev_b32 v8, 5, v8")
    g.e("v_add_u32 v7, v7, v8")
    g.e("v_lshlrev_b32 v6, 3, v6")
    g.e("v_add_u32 v7, v7, v6")
    g.e(f"v_add_u32 v7, {WB3}, v7")
    g.e("v_lshrrev_b32 v8, 1, v5")
    g.e("v_and_b32 v8, 1, v8")
    g.e("v_lshlrev_b32 v8, 6, v8")
    g.e("v_add_u32 v28, v7, v8")
    g.e("v_xor_b32 v8, 64, v8")
    g.e("v_add_u32 v29, v7, v8")

    ST_L = 0
    CS_L = 2048
    BI_L = 2048 + 256

    def extra0():
        stats_finalize(g, 180, 200, 201, 202)
        g.e("v_lshlrev_b32 v202, 3, v0")
        g.e(f"ds_write_b64 v202, v[200:201] offset:{ST_L}")
        g.e("v_cmp_gt_u32 vcc, 16, v0")
        g.e("s_and_saveexec_b64 s[56:57], vcc")
        g.e("v_lshlrev_b32 v202, 4, v0")
        g.e(f"ds_write_b128 v202, v[196:199] offset:{CS_L}")
        g.e("s_mov_b64 exec, s[56:57]")
        g.e("v_cmp_gt_u32 vcc, 8, v0")
        g.e("s_and_saveexec_b64 s[56:57], vcc")
        for d in range(4):
            g.e(f"v_lshlrev_b32 v{208+2*d}, 16, v{224+d}")
            g.e(f"v_and_b32 v{209+2*d}, 0xffff0000, v{224+d}")
        g.e("v_lshlrev_b32 v202, 5, v0")
        g.e(f"ds_write_b128 v202, v[208:211] offset:{BI_L}")
        g.e(f"ds_write_b128 v202, v[212:215] offset:{BI_L+16}")
        g.e("s_mov_b64 exec, s[56:57]")

    ts(g, 0)
    ts(g, 7)
    Loop(g, mf=32, BS=256, BN=64, BK=64, nstep=10, nstage=3, xb=4096, xsz=32768, wb=WB3, wsz=8192,
         sblks=[0, 1], nblks=[0, 1], transposed=True, acc0=100, fr0=40, fr1=60,
         vx_dma=10, vw_dma=18, nx_dma=8, nw_dma=2, vx_rd=20, vw_rd=28,
         s_xoff=60, s_woff=61, s_m0x=62, s_m0w=63, xstep_bytes=128, wstep_bytes=64 * 3456,
         w_imm_nb=lambda i, nb: (28 + nb, 0), extra_at_step0=extra0, vx_hi=32, x_hi_delta=32768).run()
    g.e("s_waitcnt vmcnt(0) lgkmcnt(0)")
    ts(g, 1)
    g.e("v_and_b32 v1, 63, v0")
    g.e("v_lshrrev_b32 v3, 5, v1")
    g.e("v_lshlrev_b32 v5, 4, v3")
    kk = 2 * 0.7978845608028654 * LOG2E
    g.e(f"s_mov_b32 s64, {hex(f2u(-kk))}")
    g.e(f"s_mov_b32 s65, {hex(f2u(-kk*0.044715))}")
    for nb in range(2):
        for gg in range(4):
            g.e(f"ds_read_b128 v[{204+4*gg}:{207+4*gg}], v5 offset:{CS_L+128*nb+32*gg}")
            g.e(f"ds_read_b128 v[{220+4*gg}:{223+4*gg}], v5 offset:{BI_L+128*nb+32*gg}")
        for sb in range(2):
            g.e("v_and_b32 v2, 31, v1")
            g.e("s_lshl_b32 s58, s26, 6")
            g.e("v_add_u32 v2, s58, v2")
            g.e(f"v_add_u32 v2, {32*sb}, v2")
            g.e("v_lshlrev_b32 v4, 3, v2")
            g.e(f"ds_read_b64 v[200:201], v4 offset:{ST_L}")
            g.e("s_lshl_b32 s54, s52, 8")
            g.e("v_add_u32 v6, s54, v2")
            g.e("v_mul_u32_u24 v6, 3456, v6")
            g.e("s_lshl_b32 s55, s53, 7")
            g.e("v_lshlrev_b32 v7, 3, v3")
            g.e("v_add_u32 v6, v6, v7")
            g.e("v_add_u32 v6, s55, v6")
            g.e("s_waitcnt lgkmcnt(0)")
            for j in range(16):
                a = 100 + (sb * 2 + nb) * 16 + j
                g.e(f"v_fma_f32 v8, v201, v{204+j}, v{220+j}")
                g.e(f"v_fma_f32 v{a}, v200, v{a}, v8")
                g.e(f"v_mul_f32 v8, v{a}, v{a}")
                g.e("v_mov_b32 v9, s64")
                g.e("v_fma_f32 v8, v8, s65, v9")
                g.e(f"v_mul_f32 v8, v8, v{a}")
                g.e("v_exp_f32 v8, v8")
                g.e("s_nop 0")
                g.e("v_add_f32 v8, 1.0, v8")
                g.e("v_rcp_f32 v8, v8")
                g.e("s_nop 0")
                g.e(f"v_mul_f32 v{a}, v{a}, v8")
            for gg in range(4):
                a = 100 + (sb * 2 + nb) * 16 + 4 * gg
                g.e(f"v_cvt_pk_bf16_f32 v{10+2*gg}, v{a}, v{a+1}")
                g.e(f"v_cvt_pk_bf16_f32 v{11+2*gg}, v{a+2}, v{a+3}")
            for gg in range(4):
                g.e(f"buffer_store_dwordx2 v[{10+2*gg}:{11+2*gg}], v6, s[48:51], 0 offen offset:{64*nb+16*gg}")
            g.e("s_nop 1")
    ts(g, 2)
    g.e("s_waitcnt vmcnt(0)")
    ts(g, 3)
    g.lab("K3_end")
    g.e("s_endpgm")


def gen_c_common_addr(g, ld_w):
    pass


def gen_k24(g, which):
    isk2 = which == 2
    name = f"k{which}"
    for L in range(2):
        kernel_begin(g, f"{name}_l{L}_kernel")
        g.e(f"s_mov_b32 s101, {L}")
        g.e(f"s_branch K{which}_body")
        KERNELS.append((f"{name}_l{L}_kernel", 256, 102))
    g.raw(".p2align 8")
    g.lab(f"K{which}_body")
    load_kernargs(g)
    g.e("s_cmp_ge_u32 s2, 256")
    g.e(f"s_cbranch_scc1 K{which}_end")
    wave_id_sgpr(g, 26)
    g.e("s_waitcnt lgkmcnt(0)")
    g.e("s_and_b32 s52, s2, 31")
    g.e("s_lshr_b32 s53, s2, 5")
    if isk2:
        g.e(f"s_add_u32 s40, s24, {WS_X2}")
        g.e("s_addc_u32 s41, s25, 0")
        g.e("s_cmp_eq_u32 s101, 0")
        g.e("s_cselect_b32 s40, s4, s40")
        g.e("s_cselect_b32 s41, s5, s41")
        srd_from(g, 36, 40, 41, XB)
        g.e(f"s_mul_i32 s42, s101, {WS_X3-WS_X1}")
        g.e("s_add_u32 s40, s24, s42")
        g.e("s_addc_u32 s41, s25, 0")
        srd_from(g, 44, 40, 41, XB)
        g.e(f"s_mul_i32 s42, s101, {2*WS_ST_V}")
        g.e(f"s_add_u32 s42, s42, {WS_ST+WS_ST_V}")
        srd_from(g, 32, 8, 9, 640 * 640 * 2)
        srd_ws(g, 28, WS_PQ, XB)
        g.e(f"s_mul_i32 s43, s101, {WS_KV_L}")
        g.e(f"s_add_u32 s43, s43, {WS_KV}")
        g.e("s_add_u32 s68, s24, s43")
        g.e("s_addc_u32 s69, s25, 0")
        g.e(f"s_mov_b32 s70, {WS_KV_L}")
        g.e("s_mov_b32 s71, 0x00020000")
    else:
        g.e(f"s_mul_i32 s42, s101, {WS_X3-WS_X1}")
        g.e("s_add_u32 s40, s24, s42")
        g.e("s_addc_u32 s41, s25, 0")
        srd_from(g, 36, 40, 41, XB)
        g.e(f"s_add_u32 s40, s24, {WS_X2}")
        g.e("s_addc_u32 s41, s25, 0")
        g.e("s_cmp_eq_u32 s101, 0")
        g.e("s_cselect_b32 s40, s40, s20")
        g.e("s_cselect_b32 s41, s41, s21")
        srd_from(g, 44, 40, 41, XB)
        g.e(f"s_mov_b32 s42, {WS_ST+2*WS_ST_V}")
        srd_from(g, 32, 16, 17, 1728 * 640 * 2)
        srd_ws(g, 28, WS_H, HB)
        srd_from(g, 68, 18, 19, 640 * 2)
    g.e("s_add_u32 s48, s24, s42")
    g.e("s_addc_u32 s49, s25, 0")
    g.e(f"s_mov_b32 s50, {WS_ST_V}")
    g.e("s_mov_b32 s51, 0x00020000")

    g.e("v_and_b32 v1, 63, v0")
    g.e("v_and_b32 v2, 15, v1")
    g.e("v_lshrrev_b32 v3, 4, v1")
    g.e("s_lshl_b32 s54, s52, 6")
    g.e("s_lshl_b32 s58, s26, 4")
    g.e("s_add_u32 s54, s54, s58")
    g.e("v_add_u32 v4, s54, v2")
    g.e("v_mul_u32_u24 v5, 1280, v4")
    g.e("s_mul_i32 s55, s53, 160")
    g.e("v_lshlrev_b32 v6, 3, v3")
    g.e("v_add_u32 v5, v5, v6")
    g.e("v_add_u32 v30, s55, v5")
    XSZ = 16384
    WSZ = 20480
    if isk2:
        XB_L = 0
        WB_L = 5 * XSZ
        NST = 3
    else:
        XB_L = 0
        NST = 4
        WB_L = NST * XSZ
    ldx = 1280 if isk2 else 3456
    if not isk2:
        g.e("v_lshrrev_b32 v4, 4, v1")
        g.e("v_and_b32 v5, 15, v1")
        g.e("s_lshl_b32 s58, s26, 4")
        for jj in range(4):
            g.e("v_add_u32 v6, s58, v4")
            g.e(f"v_add_u32 v6, {4*jj}, v6")
            g.e("v_and_b32 v7, 15, v6")
            g.e("v_xor_b32 v7, v7, v5")
            g.e("v_lshlrev_b32 v7, 4, v7")
            g.e(f"v_mul_u32_u24 v6, {ldx}, v6")
            g.e(f"v_add_u32 v{10+jj}, v6, v7")
    g.e("s_mul_i32 s58, s26, 320")
    for jj in range(5):
        g.e("v_add_u32 v4, s58, v1")
        g.e(f"v_add_u32 v4, {64*jj}, v4")
        emit_divmod(g, 4, 5, 6, 10, 1280, 7)
        g.e("v_and_b32 v7, 0x73, v5")
        g.e("v_and_b32 v8, 4, v5")
        g.e("v_lshlrev_b32 v8, 1, v8")
        g.e("v_or_b32 v7, v7, v8")
        g.e("v_and_b32 v8, 8, v5")
        g.e("v_lshrrev_b32 v8, 1, v8")
        g.e("v_or_b32 v7, v7, v8")
        g.e("v_mul_u32_u24 v7, 1280, v7")
        g.e("v_lshlrev_b32 v6, 4, v6")
        g.e(f"v_add_u32 v{14+jj}, v7, v6")
    g.e(f"s_mul_i32 s60, s52, {64*ldx}")
    g.e("s_mul_i32 s61, s53, 160")
    g.e("s_lshl_b32 s62, s26, 12")
    g.e("s_mul_i32 s63, s26, 5120")
    g.e("s_lshl_b32 s58, s26, 4")
    g.e("v_add_u32 v4, s58, v2")
    g.e("v_and_b32 v5, 15, v4")
    for kk in range(4):
        g.e(f"v_add_u32 v6, {4*kk}, v3")
        g.e("v_xor_b32 v6, v6, v5")
        g.e("v_lshlrev_b32 v6, 4, v6")
        g.e("v_lshlrev_b32 v7, 8, v4")
        g.e(f"v_add_u32 v{20+kk}, v6, v7")
        g.e(f"v_add_u32 v{32+kk}, 0x8000, v{20+kk}")
    g.e("v_lshrrev_b32 v4, 2, v2")
    g.e("v_and_b32 v5, 3, v2")
    g.e("v_lshrrev_b32 v6, 1, v3")
    g.e("v_lshlrev_b32 v6, 4, v6")
    g.e("v_and_b32 v7, 1, v3")
    g.e("v_lshlrev_b32 v7, 2, v7")
    g.e("v_add_u32 v4, v4, v6")
    g.e("v_add_u32 v4, v4, v7")
    g.e("v_mul_u32_u24 v4, 160, v4")
    g.e("v_lshlrev_b32 v5, 3, v5")
    g.e("v_add_u32 v4, v4, v5")
    g.e(f"v_add_u32 v24, {WB_L}, v4")
    g.e(f"v_add_u32 v25, {WB_L+40960}, v4")

    if isk2:
        ts(g, 4)
        hb = 8
        g.e("s_lshl_b32 s58, s26, 15")
        g.e("v_lshlrev_b32 v4, 7, v2")
        g.e("v_lshlrev_b32 v5, 5, v3")
        g.e("v_add_u32 v4, v4, v5")
        g.e("v_add_u32 v4, s58, v4")
        g.e("s_lshl_b32 s54, s52, 6")
        g.e("v_add_u32 v5, s54, v2")
        g.e("v_mul_u32_u24 v5, 1280, v5")
        g.e("v_lshlrev_b32 v6, 4, v3")
        g.e("v_add_u32 v5, v5, v6")
        g.e("s_mul_i32 s59, s26, 320")
        g.e("v_add_u32 v5, s59, v5")
        g.e("v_cmp_gt_u32 s[72:73], 3, v3")
        g.e("v_cmp_gt_u32 s[74:75], 2, v3")
        DEPTH = 5

        def head_loads(hh):
            base = 40 + 32 * (hh % DEPTH)
            for bb in range(2):
                g.e(f"buffer_load_dwordx4 v[{base+8*bb}:{base+3+8*bb}], v4, s[68:71], 0 offen offset:{2048*bb}")
                g.e(f"buffer_load_dwordx4 v[{base+4+8*bb}:{base+7+8*bb}], v4, s[68:71], 0 offen offset:{2048*bb+16}")
            for rb in range(4):
                g.e(f"s_mov_b32 s59, {16*rb*1280}")
                g.e(f"buffer_load_dwordx4 v[{base+16+4*rb}:{base+19+4*rb}], v5, s[28:31], s59 offen")
            g.e("v_add_u32 v4, 4096, v4")
            g.e("v_add_u32 v5, 40, v5")

        for hh in range(DEPTH):
            head_loads(hh)
        issued = DEPTH
        for hh in range(hb):
            base = 40 + 32 * (hh % DEPTH)
            g.e(f"s_waitcnt vmcnt({8*(issued-hh-1)})")
            for bb in range(2):
                for p in range(4):
                    g.e(f"v_cvt_pk_bf16_f32 v{200+4*bb+p}, v{base+8*bb+2*p}, v{base+1+8*bb+2*p}")
            for rb in range(4):
                r = base + 16 + 4 * rb
                g.e(f"v_cndmask_b32 v{r}, 0, v{r}, s[72:73]")
                g.e(f"v_cndmask_b32 v{r+1}, 0, v{r+1}, s[72:73]")
                g.e(f"v_cndmask_b32 v{r+2}, 0, v{r+2}, s[74:75]")
                g.e(f"v_cndmask_b32 v{r+3}, 0, v{r+3}, s[74:75]")
            for r in range(32):
                g.e(f"v_mov_b32 v{208+r}, 0")
            g.e("s_nop 1")
            for rb in range(4):
                for bb in range(2):
                    a_ = 208 + 8 * rb + 4 * bb
                    g.e(f"v_mfma_f32_16x16x32_bf16 v[{a_}:{a_+3}], v[{200+4*bb}:{203+4*bb}], v[{base+16+4*rb}:{base+19+4*rb}], v[{a_}:{a_+3}]")
            if issued < hb:
                head_loads(issued)
                issued += 1
            else:
                g.e("s_nop 7")
                g.e("s_nop 1")
            g.e("s_nop 3")
            g.e("v_lshlrev_b32 v6, 2, v2")
            g.e("v_add_u32 v6, 64, v6")
            for rb in range(4):
                g.e(f"ds_bpermute_b32 v{240+rb}, v6, v{208+8*rb+4}")
            g.e("s_waitcnt lgkmcnt(0)")
            for rb in range(4):
                g.e(f"v_add_f32 v{240+rb}, {f2u(1e-6)}, v{240+rb}")
                g.e(f"v_rcp_f32 v{240+rb}, v{240+rb}")
            g.e("s_nop 0")
            g.e(f"s_mul_i32 s59, s26, 160")
            g.e(f"s_add_u32 s59, s59, {20*hh}")
            for bb in range(2):
                g.e("v_lshlrev_b32 v7, 2, v3")
                g.e("v_add_u32 v7, s59, v7")
                if bb == 1:
                    g.e("v_add_u32 v7, 16, v7")
                g.e("v_lshrrev_b32 v8, 7, v7")
                g.e("v_lshlrev_b32 v8, 14, v8")
                g.e("v_and_b32 v9, 127, v7")
                g.e("v_lshrrev_b32 v9, 3, v9")
                g.e("v_and_b32 v7, 7, v7")
                g.e("v_lshlrev_b32 v7, 1, v7")
                g.e("v_add_u32 v8, v8, v7")
                g.e("v_xor_b32 v246, v9, v2")
                g.e("v_lshlrev_b32 v246, 4, v246")
                g.e("v_lshlrev_b32 v247, 8, v2")
                g.e("v_add3_u32 v246, v246, v247, v8")
                for rb in range(4):
                    a_ = 208 + 8 * rb + 4 * bb
                    for r in range(4):
                        g.e(f"v_mul_f32 v{a_+r}, v{a_+r}, v{240+rb}")
                    g.e(f"v_cvt_pk_bf16_f32 v244, v{a_}, v{a_+1}")
                    g.e(f"v_cvt_pk_bf16_f32 v245, v{a_+2}, v{a_+3}")
                    if bb == 1:
                        g.e("v_cmp_eq_u32 vcc, 0, v3")
                        g.e("s_and_saveexec_b64 s[56:57], vcc")
                    g.e(f"ds_write_b64 v246, v[244:245] offset:{16*rb*256}")
                    if bb == 1:
                        g.e("s_mov_b64 exec, s[56:57]")
        g.e("s_waitcnt lgkmcnt(0)")

    for nb in range(5):
        g.e(f"buffer_load_dwordx2 v[{220+2*nb}:{221+2*nb}], v30, s[36:39], 0 offen offset:{32*nb}")
    if not isk2:
        g.e("s_mul_i32 s55, s53, 160")
        g.e("v_lshlrev_b32 v6, 3, v3")
        g.e("v_add_u32 v6, s55, v6")
        for nb in range(5):
            g.e(f"buffer_load_dwordx2 v[{230+2*nb}:{231+2*nb}], v6, s[68:71], 0 offen offset:{32*nb}")
    nstep = 5 if isk2 else 14
    Loop(g, mf=16, BS=64, BN=80, BK=128, nstep=nstep, nstage=NST, xb=XB_L, xsz=XSZ, wb=WB_L, wsz=WSZ,
         sblks=[0], nblks=[0, 1, 2, 3, 4], transposed=True, acc0=100, fr0=40, fr1=64,
         vx_dma=10, vw_dma=14, nx_dma=4, nw_dma=5, vx_rd=20, vw_rd=24,
         s_xoff=60, s_woff=61, s_m0x=62, s_m0w=63, xstep_bytes=256, wstep_bytes=128 * 1280,
         x_resident=isk2, last_sub=(None if isk2 else 2),
         w_imm_nb=lambda i, nb: (24, 32 * nb), vw_hi=25, w_hi_delta=40960, vx_hi=32, x_hi_delta=32768).run()
    g.e("s_waitcnt vmcnt(0) lgkmcnt(0)")
    ts(g, 1)
    for nb in range(5):
        for p in range(2):
            g.e(f"v_lshlrev_b32 v{40+4*nb+2*p}, 16, v{220+2*nb+p}")
            g.e(f"v_and_b32 v{41+4*nb+2*p}, 0xffff0000, v{220+2*nb+p}")
            if not isk2:
                g.e(f"v_lshlrev_b32 v{60+4*nb+2*p}, 16, v{230+2*nb+p}")
                g.e(f"v_and_b32 v{61+4*nb+2*p}, 0xffff0000, v{230+2*nb+p}")
    for nb in range(5):
        for j in range(4):
            a = 100 + 4 * nb + j
            if not isk2:
                g.e(f"v_add_f32 v{a}, v{a}, v{60+4*nb+j}")
            g.e(f"v_add_f32 v{a}, v{a}, v{40+4*nb+j}")
    for nb in range(5):
        g.e(f"v_cvt_pk_bf16_f32 v{80+2*nb}, v{100+4*nb}, v{101+4*nb}")
        g.e(f"v_cvt_pk_bf16_f32 v{81+2*nb}, v{102+4*nb}, v{103+4*nb}")
    for nb in range(5):
        g.e(f"buffer_store_dwordx2 v[{80+2*nb}:{81+2*nb}], v30, s[44:47], 0 offen offset:{32*nb}")
    for nb in range(5):
        for p in range(2):
            g.e(f"v_lshlrev_b32 v{100+4*nb+2*p}, 16, v{80+2*nb+p}")
            g.e(f"v_and_b32 v{101+4*nb+2*p}, 0xffff0000, v{80+2*nb+p}")
    g.e("v_add_f32 v4, v100, v101")
    for i in range(2, 20):
        g.e(f"v_add_f32 v4, v4, v{100+i}")
    g.e("ds_swizzle_b32 v5, v4 offset:0x401F")
    g.e("s_waitcnt lgkmcnt(0)")
    g.e("v_add_f32 v4, v4, v5")
    g.e("v_mov_b32 v5, v4")
    g.e("s_nop 1")
    g.e("v_permlane32_swap_b32 v5, v5") if False else None
    g.e("v_xor_b32 v6, 32, v1")
    g.e("v_lshlrev_b32 v6, 2, v6")
    g.e("ds_bpermute_b32 v5, v6, v4")
    g.e("s_waitcnt lgkmcnt(0)")
    g.e("v_add_f32 v4, v4, v5")
    g.e(f"v_mul_f32 v7, {f2u(1.0/80.0)}, v4")
    g.e("v_mov_b32 v8, 0")
    for i in range(20):
        g.e(f"v_sub_f32 v9, v{100+i}, v7")
        g.e("v_fma_f32 v8, v9, v9, v8")
    g.e("ds_swizzle_b32 v5, v8 offset:0x401F")
    g.e("s_waitcnt lgkmcnt(0)")
    g.e("v_add_f32 v8, v8, v5")
    g.e("ds_bpermute_b32 v5, v6, v8")
    g.e("s_waitcnt lgkmcnt(0)")
    g.e("v_add_f32 v5, v8, v5")
    g.e("s_lshl_b32 s54, s52, 6")
    g.e("s_lshl_b32 s58, s26, 4")
    g.e("s_add_u32 s54, s54, s58")
    g.e("v_add_u32 v10, s54, v2")
    g.e("v_lshlrev_b32 v10, 6, v10")
    g.e("s_lshl_b32 s55, s53, 3")
    g.e("v_cmp_eq_u32 vcc, 0, v3")
    g.e("s_and_saveexec_b64 s[56:57], vcc")
    g.e("buffer_store_dwordx2 v[4:5], v10, s[48:51], s55 offen")
    g.e("s_mov_b64 exec, s[56:57]")
    ts(g, 2)
    g.e("s_waitcnt vmcnt(0)")
    ts(g, 3)
    g.lab(f"K{which}_end")
    g.e("s_endpgm")


def main():
    g = Gen()
    hdr = open(OUT + ".ref").read().split("; Override launch geometry")[0]
    g.raw(hdr.rstrip("\n"))
    launches = [
        ("k0_prep_kernel", 201, 24576),
        ("k1_l0_kernel", 192, 151552),
        ("k2_l0_kernel", 256, 143360),
        ("k3_l0_kernel", 216, 126976),
        ("k4_l0_kernel", 256, 147456),
        ("k1_l1_kernel", 192, 151552),
        ("k2_l1_kernel", 256, 143360),
        ("k3_l1_kernel", 216, 126976),
        ("k4_l1_kernel", 256, 147456),
    ]
    for (k, gx, lds) in launches:
        g.raw(f"; @launch kernel={k} grid=({gx},1,1) block=(256,1,1) lds={lds}")
    g.raw('.amdgcn_target "amdgcn-amd-amdhsa--gfx950"')
    g.raw(".text")
    gen_k0(g)
    gen_k1(g)
    gen_k3(g)
    gen_k24(g, 2)
    gen_k24(g, 4)
    g.raw('.section .rodata,"a"')
    for (name, vg, sg) in KERNELS:
        g.raw(".p2align 6")
        g.raw(f".amdhsa_kernel {name}")
        g.raw(f"  .amdhsa_next_free_vgpr {vg}")
        g.raw(f"  .amdhsa_next_free_sgpr {sg}")
        g.raw(f"  .amdhsa_accum_offset {vg}")
        g.raw("  .amdhsa_group_segment_fixed_size 0")
        g.raw("  .amdhsa_kernarg_size 88")
        g.raw("  .amdhsa_user_sgpr_count 2")
        g.raw("  .amdhsa_user_sgpr_kernarg_segment_ptr 1")
        g.raw("  .amdhsa_system_sgpr_workgroup_id_x 1")
        g.raw(".end_amdhsa_kernel")
    open(OUT, "w").write("\n".join(g.L) + "\n")
    print("wrote", OUT, len(g.L), "lines")


if __name__ == "__main__":
    main()
```
